```python
import torch

def _softmax(x, axis=-1):
    return torch.softmax(x, dim=axis)

def _gelu(x):
    return torch.nn.functional.gelu(x, approximate='tanh')

def _silu(x):
    return torch.nn.functional.silu(x)

def _sigmoid(x):
    return torch.sigmoid(x)

def _layernorm(x, axis=-1, eps=1e-05):
    m = x.mean(dim=axis, keepdim=True)
    v = x.var(dim=axis, keepdim=True, unbiased=False)
    return (x - m) / torch.sqrt(v + eps)

def _scatter_add(tgt, idx, src, axis=0):
    return tgt.clone().index_add_(axis, idx, src)

def _segment_sum(src, seg, n):
    out = torch.zeros((n,) + src.shape[1:], dtype=src.dtype)
    return out.index_add_(0, seg, src)

def _pad(x, pw):
    flat = tuple((v for pair in reversed(pw) for v in pair))
    return torch.nn.functional.pad(x, flat)
kernel_name = 'adaLN_cond__ssm_conv_s4d__glu_gated_swiglu__prompt'

def setup_inputs():

    _w = lambda a: (lambda t: t.to(torch.bfloat16) if t.is_floating_point() else t)(torch.as_tensor(a))

    def _A_setup():
        Bsz, L, D, N = (1, 2048, 640, 128)
        return {'u': _w((lambda *s: torch.randn(*s, dtype=torch.bfloat16) * 0.05)(Bsz, L, D)), 'log_A_real': _w((lambda *s: torch.randn(*s, dtype=torch.bfloat16) * 3.2)(D, N) * 0.5), 'A_imag': _w((lambda *s: torch.randn(*s, dtype=torch.bfloat16) * 0.05)(D, N) * 3.14), 'C_real': _w((lambda *s: torch.randn(*s, dtype=torch.bfloat16) * 0.2)(D, N) / N ** 0.5), 'C_imag': _w((lambda *s: torch.randn(*s, dtype=torch.bfloat16) * 0.2)(D, N) / N ** 0.5), 'log_dt': _w((lambda *s: torch.randn(*s, dtype=torch.bfloat16) * 0.05)(D) * 0.5 - 4.0), 'D_skip': _w((lambda *s: torch.randn(*s, dtype=torch.bfloat16) * 0.05)(D))}
    _A_in = _A_setup()

    def _B_setup():
        B, S, D, F = (1, 2048, 640, 1728)
        return {'x': _w((lambda *s: torch.randn(*s, dtype=torch.bfloat16) * 0.05)(B, S, D)), 'w1': _w((lambda *s: torch.randn(*s, dtype=torch.bfloat16) * 0.4)(D, F) * (2.0 / D) ** 0.5), 'w3': _w((lambda *s: torch.randn(*s, dtype=torch.bfloat16) * 0.4)(D, F) * (2.0 / D) ** 0.5), 'w2': _w((lambda *s: torch.randn(*s, dtype=torch.bfloat16) * 0.4)(F, D) * (2.0 / F) ** 0.5)}
    _B_in = _B_setup()
    return {'A_u': _A_in['u'], 'A_log_A_real': _A_in['log_A_real'], 'A_A_imag': _A_in['A_imag'], 'A_C_real': _A_in['C_real'], 'A_C_imag': _A_in['C_imag'], 'A_log_dt': _A_in['log_dt'], 'A_D_skip': _A_in['D_skip'], 'B_x': _B_in['x'], 'B_w1': _B_in['w1'], 'B_w3': _B_in['w3'], 'B_w2': _B_in['w2'], 'c': _w((lambda *s: torch.randn(*s, dtype=torch.bfloat16) * 0.2)(1, 640) * 8.0), 'w_mod': _w((lambda *s: torch.randn(*s, dtype=torch.bfloat16) * 0.2)(640, 6 * 640) * 640 ** (-0.5) * 8.0)}

def reference(A_u, A_log_A_real, A_A_imag, A_C_real, A_C_imag, A_log_dt, A_D_skip, B_x, B_w1, B_w3, B_w2, c, w_mod):

    def _A_ref(u, log_A_real, A_imag, C_real, C_imag, log_dt, D_skip):
        L = u.shape[1]
        dt = torch.exp(log_dt)
        A = -torch.exp(log_A_real) + 1j * A_imag
        C = (C_real + 1j * C_imag) * dt[:, None]
        pos = (lambda x, dt: x.to(dt))(torch.arange(L), log_dt.dtype)
        P = torch.exp((A * dt[:, None])[:, :, None] * pos[None, None, :])
        K = 2.0 * torch.einsum('dn,dnl->dl', C, P).real
        L2 = 2 * L
        u_t = (lambda x, *d: x.permute(*d))(u, 0, 2, 1)
        Kf = (lambda x, *a, **k: torch.fft.rfft(x.float(), *a, **k))(K, L2)
        Uf = (lambda x, *a, **k: torch.fft.rfft(x.float(), *a, **k))(u_t, L2)
        y = (lambda x, *a, **k: torch.fft.irfft(x, *a, **k).to(torch.bfloat16))(Uf * Kf[None, :, :], L2)[:, :, :L]
        y = (lambda x, *d: x.permute(*d))(y, 0, 2, 1)
        return y + u * D_skip[None, None, :]

    def _B_ref(x, w1, w3, w2):
        gate = torch.einsum('bsd,df->bsf', x, w1)
        up = torch.einsum('bsd,df->bsf', x, w3)
        h = _silu(gate) * up
        out = torch.einsum('bsf,fd->bsd', h, w2)
        return out
    x = A_u
    mod = (_silu(c) @ w_mod).reshape(c.shape[0], 6, 1, -1)
    sa, ca, ga, sb, cb, gb = (mod[:, 0].clone(), mod[:, 1].clone(), mod[:, 2].clone(), mod[:, 3].clone(), mod[:, 4].clone(), mod[:, 5].clone())
    h = _layernorm(x, axis=-1) * (1 + ca) + sa
    x = x + ga * _A_ref(h, A_log_A_real, A_A_imag, A_C_real, A_C_imag, A_log_dt, A_D_skip)
    h = _layernorm(x, axis=-1) * (1 + cb) + sb
    x = x + gb * _B_ref(h, B_w1, B_w3, B_w2)
    return x
```

```python
import os
DBG=int(os.environ.get('DBG','0'))
NAME="adaLN_cond__ssm_conv_s4d__glu_gated_swiglu__prompt"
MODP=0x0; ST1=0x10000; SP=0x20000; X4=0x100000; KX=0x400000; X14=0x700000; WP=0xA00000; W2P=0xF00000; ACT8=0x1200000
ARG=dict(u=0,lar=8,ai=16,cr=24,ci=32,ldt=40,dsk=48,w1=64,w3=72,w2=80,c=88,wmod=96,out=104,dbg=112,ws=120)
class A:
    def __init__(s): s.l=[]
    def __call__(s,t):
        for x in t.strip('\n').split('\n'): s.l.append('    '+x.strip() if not x.strip().endswith(':') else x.strip())
    def ld(s,d,arg): s(f"s_load_dwordx2 s[{d}:{d+1}], s[0:1], {ARG[arg]}")
    def srd(s,d,size):
        s(f"s_mov_b32 s{d+2}, {size}\ns_mov_b32 s{d+3}, 0x00020000")
    def wsrd(s,d,b,off,size):
        s(f"s_add_u32 s{d}, s{b}, {off}\ns_addc_u32 s{d+1}, s{b+1}, 0"); s.srd(d,size)
    def rbf(s,v):
        s(f"v_cvt_pk_bf16_f32 v{v}, v{v}, v{v}\nv_lshlrev_b32 v{v}, 16, v{v}")
    def stamp(s,i):
        if DBG: s(f"s_memrealtime s[{88+2*i}:{89+2*i}]")
    def cyc(s,k):
        if DBG: s(f"s_memtime s[{76+2*k}:{77+2*k}]"); s.c=1
    def flush(s,slot,n):
        if not DBG: return
        s.stamp(n-1)
        s("s_mov_b64 exec, -1\ns_load_dwordx2 s[84:85], s[0:1], 120\nv_mov_b32 v1, 0\nv_cmp_eq_u32 vcc, 0, v0\ns_and_saveexec_b64 s[86:87], vcc\ns_waitcnt vmcnt(0) lgkmcnt(0)")
        s.wsrd(84,84,0x1F00000+512*s.kid,256)
        if getattr(s,'c',0):
            s.c=0; s("s_sub_u32 s76, s78, s76\nv_mov_b32 v2, s76\nv_not_b32 v3, v2\nbuffer_atomic_umax v2, v1, s[84:87], 0 offen offset:240\nbuffer_atomic_umax v3, v1, s[84:87], 0 offen offset:244")
        for i in range(n):
            s(f"v_mov_b32 v2, s{88+2*i}\nv_not_b32 v3, v2\nbuffer_atomic_umax v2, v1, s[84:87], 0 offen offset:{8*(slot+i)}\nbuffer_atomic_umax v3, v1, s[84:87], 0 offen offset:{8*(slot+i)+4}\ns_waitcnt vmcnt(0)")
    def head(s,k):
        s.kid=getattr(s,'kid',-1)+1
        s.l+= [f".globl {k}",".p2align 8",f".type {k},@function",f"{k}:"]
    def txt(s): return '\n'.join(s.l)+'\n'
def desc(k,vg,acc,sg=96):
    if DBG: sg=102
    return f""".p2align 6
.amdhsa_kernel {k}
  .amdhsa_next_free_vgpr {vg}
  .amdhsa_next_free_sgpr {sg}
  .amdhsa_accum_offset {acc}
  .amdhsa_group_segment_fixed_size 0
  .amdhsa_kernarg_size 128
  .amdhsa_user_sgpr_count 2
  .amdhsa_user_sgpr_kernarg_segment_ptr 1
  .amdhsa_system_sgpr_workgroup_id_x 1
.end_amdhsa_kernel
"""
LOG2E="0x3fb8aa3b"

def unp(a,d,s,hi): a(f"v_and_b32 v{d}, 0xffff0000, v{s}" if hi else f"v_lshlrev_b32 v{d}, 16, v{s}")
def cexp(a,dr,di,tau,va,vb,t):
    if tau is None: a(f"v_exp_f32 v{t}, v{va}\nv_fract_f32 v{t+1}, v{vb}")
    else: a(f"v_mul_f32 v{t}, {tau}, v{va}\nv_mul_f32 v{t+1}, {tau}, v{vb}\nv_exp_f32 v{t}, v{t}\nv_fract_f32 v{t+1}, v{t+1}")
    a(f"v_cos_f32 v{dr}, v{t+1}\nv_sin_f32 v{di}, v{t+1}\ns_nop 0\nv_mul_f32 v{dr}, v{dr}, v{t}\nv_mul_f32 v{di}, v{di}, v{t}")
def lnstat(a,s,q):
    a(f"v_mul_f32 v{s}, 0x3acccccd, v{s}\nv_mul_f32 v{q}, 0x3acccccd, v{q}\nv_fma_f32 v{q}, -v{s}, v{s}, v{q}\nv_max_f32 v{q}, 0, v{q}")
    a.rbf(s); a.rbf(q)
    a(f"v_add_f32 v{q}, 0x3727c5ac, v{q}"); a.rbf(q)
    a(f"v_sqrt_f32 v{q}, v{q}\ns_nop 0"); a.rbf(q)
    a(f"v_rcp_f32 v{q}, v{q}\ns_nop 0")
def signal(a,srd,soff,va,vb):
    a(f"v_mov_b32 v{va}, 0\nv_mov_b32 v{vb}, 1\ns_mov_b64 exec, 1\nbuffer_store_dword v{vb}, v{va}, s[{srd}:{srd+3}], {soff} offen sc1\ns_mov_b64 exec, -1")
def poll(a,lab,srd,voff,vexp,vt,soff="0"):
    a(f"{lab}:\nbuffer_load_dword v{vt}, v{voff}, s[{srd}:{srd+3}], {soff} offen sc1\ns_waitcnt vmcnt(0)\nv_and_b32 v{vt}, v{vt}, v{vexp}\nv_cmp_eq_u32 vcc, v{vt}, v{vexp}\ns_nop 4\ns_cmp_eq_u64 vcc, -1\ns_cbranch_scc1 {lab}_ok\ns_sleep {SLP}\ns_branch {lab}\n{lab}_ok:")
ST2=0x18000
WT=os.environ.get('WT','')
SLP=int(os.environ.get('SLP','4'))
def bmask(a,vb,vo,vm):
    a(f"v_and_b32 v{vm}, 3, v{vb}\nv_lshlrev_b32 v{vm}, 3, v{vm}\nv_lshlrev_b32_e64 v{vm}, v{vm}, 1\nv_and_b32 v{vo}, 0xfc, v{vb}")
FLG=0x1C000
def pollgo(a,lab,srd,v0_,vt):
    a(f"v_mov_b32 v{v0_}, 0\n{lab}:\nbuffer_load_dword v{vt}, v{v0_}, s[{srd}:{srd+3}], 0 offen sc1\ns_waitcnt vmcnt(0)\nv_readfirstlane_b32 s60, v{vt}\ns_cmp_lg_u32 s60, 0\ns_cbranch_scc1 {lab}_ok\ns_sleep 2\ns_branch {lab}\n{lab}_ok:")
def pollf(a,lab,srd,offs,vt):
    a(f"{lab}:")
    for i,(v,o) in enumerate(offs): a(f"buffer_load_dword v{vt+i}, v{v}, s[{srd}:{srd+3}], 0 offen offset:{o} sc1")
    a("s_waitcnt vmcnt(0)")
    for i in range(1,len(offs)): a(f"v_and_b32 v{vt}, v{vt}, v{vt+i}")
    a(f"v_cmp_eq_u32 vcc, 1, v{vt}\ns_nop 4\ns_cmp_eq_u64 vcc, -1\ns_cbranch_scc1 {lab}_ok\ns_sleep {SLP}\ns_branch {lab}\n{lab}_ok:")
```

```python
from common import *
import f1a
KR=4224; SB=4*KR; RS=272; SW=53*RS; LDS=SB+4*SW; HB=SB; HR=4608; YB=HB+4*HR
NP=248; NWG=NP+160
def cmul(d,p,e,t,conj):
    n1="neg_lo:[0,1]" if not conj else ""; n2="neg_hi:[0,1,0]" if conj else ""
    return [f"v_pk_mul_f32 v[{t}:{t+1}], v[{p}:{p+1}], v[{e}:{e+1}] op_sel:[1,1] op_sel_hi:[1,0] {n1}",
            f"v_pk_fma_f32 v[{d}:{d+1}], v[{p}:{p+1}], v[{e}:{e+1}], v[{t}:{t+1}] op_sel_hi:[0,1,1] {n2}"]
def gen(a):
    a.head("front_kernel")
    a(f"s_cmp_ge_u32 s2, {NWG+8}\ns_cbranch_scc1 f_pend\ns_cmp_lt_u32 s2, 8\ns_cbranch_scc1 f_ipf\ns_sub_u32 s2, s2, 8")
    a.ld(4,'ws'); a.ld(28,'dbg'); a.stamp(0)
    a(f"v_and_b32 v1, 63, v0\nv_lshrrev_b32 v2, 6, v0\ns_cmp_lt_u32 s2, {NP}\nv_readfirstlane_b32 s32, v2\ns_cbranch_scc1 f_prod")
    a(f"s_setprio {os.environ.get('PR','2')}")
    a.ld(8,'lar'); a.ld(12,'ai'); a.ld(16,'cr'); a.ld(20,'ci'); a.ld(24,'ldt'); a.ld(6,'dsk')
    a(f"s_sub_u32 s2, s2, {NP}\ns_lshl_b32 s3, s2, 2\ns_add_u32 s3, s3, s32\ns_lshl_b32 s33, s3, 8\ns_lshl_b32 s3, s3, 1\nv_lshlrev_b32 v4, 2, v1\nv_mov_b32 v5, 0\ns_lshl_b32 s34, s2, 3\ns_waitcnt lgkmcnt(0)")
    for d in (8,12,16,20): a.srd(d,640*256)
    a.srd(24,1280); a.srd(28,256)
    a("buffer_load_ushort v10, v5, s[24:27], s3 offen")
    for i,d in enumerate((8,12,16,20)): a(f"buffer_load_dword v{11+i}, v4, s[{d}:{d+3}], s33 offen")
    a("s_add_u32 s6, s6, s34\ns_addc_u32 s7, s7, 0\ns_load_dwordx2 s[36:37], s[6:7], 0")
    a.wsrd(40,4,X4,2048*1280); a.wsrd(44,4,ST1,16384); a.wsrd(48,4,MODP,2*15360); a.wsrd(52,4,X14,2048*1280)
    a(f"s_mul_i32 s35, s32, {SW}\ns_add_u32 s35, s35, {SB}\nv_add_u32 v6, s35, v4\nv_and_b32 v8, 31, v1\nv_lshrrev_b32 v9, 5, v1")
    a(f"v_min_u32 v60, 20, v8\nv_mul_u32_u24 v60, {RS}, v60\nv_mul_u32_u24 v61, {RS}, v8\nv_lshl_add_u32 v7, v9, 4, s35\nv_add_u32 v60, v60, v7\nv_add_u32 v61, v61, v7")
    a(f"v_lshl_add_u32 v62, v1, 4, s35\ns_mul_i32 s38, s32, {KR}\nv_lshl_add_u32 v63, v1, 4, s38\nv_lshl_add_u32 v7, v8, 2, s38\nds_write_b32 v7, v5")
    a("v_lshl_add_u32 v7, v8, 4, s35\nv_lshl_add_u32 v48, v9, 3, v7")
    c0=[512,516,520,524,2048,2560,3072,3584]; c1=[1024,1032,1536,1544,4096,4096,4096,4096]
    for b in range(8): a(f"s_movk_i32 s39, {c1[b]-c0[b]}\nv_mad_u32_u24 v{49+b}, v9, s39, v7")
    a("v_mov_b32 v57, 0x03020100\nv_mov_b32 v58, 0x03020100\ns_mov_b32 exec_lo, 0\nv_mov_b32 v57, 0x01000100\nv_mov_b32 v58, 0x05040100\ns_mov_b32 exec_lo, -1")
    a("v_and_b32 v59, 1, v1\nv_mul_u32_u24 v59, 0x404, v59\nv_add_u32 v59, 0x05040100, v59\ns_mov_b32 s56, 0x01000100\ns_mov_b32 s57, 0x05040100")
    a(f"s_waitcnt vmcnt(0)"); a.stamp(1)
    a(f"v_lshlrev_b32 v10, 16, v10\nv_mul_f32 v10, {LOG2E}, v10\nv_exp_f32 v10, v10\ns_nop 0"); a.rbf(10)
    def kmm(h):
        for s in range(8): a(f"v_mfma_f32_32x32x16_bf16 v[128:143], v[{64+4*s}:{67+4*s}], v[{96+4*s}:{99+4*s}], {'0' if h==0 and s==0 else 'v[128:143]'}")
    for h in range(2):
        unp(a,15,11,h); unp(a,9,12,h); unp(a,32,13,h); unp(a,33,14,h)
        a(f"v_mul_f32 v15, {LOG2E}, v15\nv_exp_f32 v15, v15\nv_mul_f32 v9, v9, v10\nv_add_f32 v8, v10, v10"); a.rbf(15)
        a("v_mul_f32 v15, v15, v10\nv_mul_f32 v9, 0.15915494, v9\nv_mul_f32 v15, 0xbfb8aa3b, v15\nv_mul_f32 v32, v32, v8\nv_mul_f32 v33, v33, -v8")
        cexp(a,16,17,"0x41000000",15,9,22); cexp(a,18,19,None,15,9,22); cexp(a,20,21,"0x43800000",15,9,22)
        if h==1: a("s_waitcnt lgkmcnt(0)"); kmm(0)
        V=[["v_mov_b32 v26, 0x3f80","ds_write_b32 v6, v26","v_cvt_pk_bf16_f32 v26, v16, v17",f"ds_write_b32 v6, v26 offset:{RS}"]]
        p=16
        for j in range(2,32):
            d=28+2*(j&1); V.append(cmul(d,p,16,22,0)+[f"v_cvt_pk_bf16_f32 v26, v{d}, v{d+1}",f"ds_write_b32 v6, v26 offset:{RS*j}"]); p=d
        def st(r,row): return [f"v_cvt_pk_bf16_f32 v27, v{r}, v{r+1}",f"ds_write_b32 v6, v27 offset:{RS*(32+row)}"]
        U=[st(32,0)]
        for r in range(1,8): U.append(cmul(32+2*r,30+2*r,18,24,1)+st(32+2*r,r))
        for i,r in enumerate((0,2,4,6,0,4,0,4,0,0,0,0,0)): U.append(cmul(32+2*r,32+2*r,20,24,1)+st(32+2*r,8+i))
        for i in range(31):
            x=V[i]; y=U[i] if i<len(U) else []
            for k in range(4):
                a(x[k])
                if k<len(y): a(y[k])
        for s in range(8): a(f"ds_read_b128 v[{64+4*s}:{67+4*s}], v60 offset:{32*RS+32*s}\nds_read_b128 v[{96+4*s}:{99+4*s}], v61 offset:{32*s}")
    a("s_waitcnt lgkmcnt(0)"); kmm(1)
    a("v_lshrrev_b32 v8, 5, v0\nv_and_b32 v9, 31, v0\nv_lshlrev_b32 v3, 11, v8\nv_lshl_add_u32 v3, v9, 4, v3\nv_lshrrev_b32 v5, 2, v3")
    a("v_bfe_u32 v8, v1, 4, 1\nv_lshrrev_b32 v9, 5, v1\nv_bfe_u32 v10, v1, 2, 2\nv_and_b32 v11, 3, v1")
    a("v_lshlrev_b32 v6, 5, v8\nv_lshl_add_u32 v6, v11, 3, v6\nv_lshlrev_b32 v12, 6, v9\nv_lshl_add_u32 v12, v10, 3, v12\nv_sub_u32 v6, v6, v12")
    a("s_add_u32 s3, s38, 160\nv_add_u32 v6, s3, v6\nv_lshlrev_b32 v7, 8, v8\nv_lshl_add_u32 v7, v11, 6, v7\nv_add_u32 v7, v7, v12")
    a(f"s_mul_i32 s33, s32, {HR}\ns_add_u32 s3, s33, {HB+64}\nv_add_u32 v7, s3, v7")
    for i in range(6): a(f"v_cvt_pk_bf16_f32 v{16+i}, v{128+2*i}, v{129+2*i}")
    a("ds_write_b64 v48, v[16:17]")
    for b in range(8): a(f"ds_write_b16{'_d16_hi' if b&1 else ''} v{49+b}, v{18+(b>>1)} offset:{c0[b]}")
    a("ds_read_b128 v[16:19], v62\nds_read_b32 v20, v62 offset:16")
    for i,o in enumerate((1024,1032,1040,2048,2064,3072,3088)): a(f"ds_read_b32 v{21+i}, v62 offset:{o}")
    a("s_waitcnt lgkmcnt(0)")
    a("v_perm_b32 v32, v17, v16, v57\nv_perm_b32 v33, v18, v17, v58\nv_perm_b32 v34, v19, v18, v57\nv_perm_b32 v35, v20, v19, v58")
    a("v_perm_b32 v36, v21, v21, s56\nv_perm_b32 v37, v22, v21, s57\nv_perm_b32 v38, v22, v22, s56\nv_perm_b32 v39, v23, v23, s56")
    for j in range(2):
        A=24+2*j; o=40+4*j
        a(f"v_perm_b32 v{o}, v{A}, v{A}, s56\nv_perm_b32 v{o+1}, v{A}, v{A}, s56\nv_perm_b32 v{o+2}, v{A+1}, v{A}, v59\nv_perm_b32 v{o+3}, v{A+1}, v{A+1}, s56")
    for j in range(4): a(f"ds_write_b128 v63, v[{32+4*j}:{35+4*j}] offset:{128+1024*j}")
    a.stamp(2)
    a("s_cmp_lg_u32 s32, 0\ns_cbranch_scc1 f_pc_ok\ns_lshr_b32 s3, s2, 4\ns_add_u32 s3, s3, 128\nv_and_b32 v8, 1, v1\nv_mul_u32_u24 v8, 60, v8\nv_bfe_u32 v9, v1, 1, 2\nv_min_u32 v9, 2, v9\nv_mul_u32_u24 v9, 10, v9\nv_add3_u32 v10, v8, v9, s3")
    a.wsrd(64,4,FLG,4096); pollgo(a,"f_g3",28,8,9)
    a("v_lshlrev_b32 v8, 4, v10\nv_lshlrev_b32 v9, 4, v1"); pollf(a,"f_pc",64,[(8,0),(9,0),(9,1024)],96)
    a("s_waitcnt lgkmcnt(0)\ns_barrier"); a.stamp(3)
    a("s_lshl_b32 s24, s2, 14\ns_lshl_b32 s3, s2, 4\nv_mov_b32 v8, 0\nv_mov_b32 v9, 0")
    for sec in range(3):
        for p in range(2): a(f"s_add_u32 s25, s3, {p*15360+sec*2560}\nbuffer_load_dwordx4 v[{96+8*sec+4*p}:{99+8*sec+4*p}], v8, s[48:51], s25 offen sc1")
    for j in range(4):
        a(f"buffer_load_dwordx4 v[{16+4*j}:{19+4*j}], v3, s[40:43], s24 offen offset:{512*j} sc1\nbuffer_load_dwordx4 v[{64+4*j}:{67+4*j}], v3, s[44:47], 0 offen offset:{512*j} sc1")
    a(f"v_lshl_add_u32 v10, v1, 3, s33\nds_write_b64 v10, v[8:9] offset:{HB}")
    a("s_lshl_b32 s38, s36, 16\ns_and_b32 s39, s36, 0xffff0000\ns_lshl_b32 s36, s37, 16\ns_and_b32 s37, s37, 0xffff0000\ns_mov_b32 s58, 0\ns_brev_b32 s59, 1")
    DS=(38,39,36,37)
    a(f"s_lshl_b32 s3, s32, 12\ns_add_u32 s3, s3, {YB}\nv_lshl_add_u32 v4, v1, 3, s3\ns_waitcnt vmcnt(8)")
    for sec in range(3):
        for ch in range(4):
            d=48+4*sec+ch; b=96+8*sec+ch
            a(f"v_add_f32 v{d}, v{b}, v{b+4}"); a.rbf(d)
            if sec==1: a(f"v_add_f32 v{d}, 1.0, v{d}"); a.rbf(d)
    for j in range(4):
        a(f"s_waitcnt vmcnt({6-2*j})")
        for tt in range(2):
            m=64+4*j+2*tt; a(f"v_mul_f32 v{m}, v{m}, -v{m+1}")
            for cp in range(2):
                t=8+4*tt+2*cp; x=16+4*j+2*tt+cp; unp(a,t,x,0); unp(a,t+1,x,1)
                a(f"v_pk_fma_f32 v[{t}:{t+1}], v[{t}:{t+1}], v[{m}:{m+1}], v[{m}:{m+1}] op_sel:[0,1,0] op_sel_hi:[1,1,0]")
                a(f"v_pk_fma_f32 v[{t}:{t+1}], v[{t}:{t+1}], v[{52+2*cp}:{53+2*cp}], v[{48+2*cp}:{49+2*cp}]")
        for ch in range(4): a(f"v_cvt_pk_bf16_f32 v{32+4*j+ch}, v{8+ch}, v{12+ch}\nds_write_b32 v5, v{32+4*j+ch} offset:{HB+HR*ch+512+128*j}")
    a("s_waitcnt lgkmcnt(0)\ns_barrier"); a.stamp(4)
    mf=[(r,g,d) for r in range(3) for g in range(8) for d in range(8-g)]+[(3,g,q-g) for q in range(8) for g in range(q+1)]
    need=[]; last={}; lastq={}
    for i,(r,g,d) in enumerate(mf):
        lastq[g+d]=i
        for f in (('K',r,g),('H',r,d)):
            if f not in last: need.append(f)
            last[f]=i
    free=list(range(16)); buf={}; ops=[]; nxt=0
    def issue():
        nonlocal nxt
        f=need[nxt]; nxt+=1; b=free.pop(0); buf[f]=b; R=64+4*b
        if f[0]=='K':
            o=128*(4*f[2]+f[1]); a(f"ds_read_b64_tr_b16 v[{R}:{R+1}], v6 offset:{o+32}\nds_read_b64_tr_b16 v[{R+2}:{R+3}], v6 offset:{o}")
        else:
            o=128*(4*f[2]-f[1]+3); a(f"ds_read_b64_tr_b16 v[{R}:{R+1}], v7 offset:{o}\nds_read_b64_tr_b16 v[{R+2}:{R+3}], v7 offset:{o+32}")
        ops.extend([None,f])
    def horner(q):
        L=[]
        for st in (2,1,0):
            for x in range(4):
                R=128+16*q+4*x+st
                L.append(f"v_cndmask_b32 v{8+x}, v{R+1}, v{R-3}, s[58:59]" if q+x else "v_nop")
            for x in range(4):
                R=128+16*q+4*x+st
                L.append(f"v_add_f32_dpp v{R}, v{8+x}, v{R} wave_ror:1 row_mask:0xf bank_mask:0xf" if q+x else f"v_add_f32_dpp v{R}, v{R+1}, v{R} wave_shr:1 row_mask:0xf bank_mask:0xf bound_ctrl:0")
        R=128+16*q; t=12+2*(q&1)
        return L+[f"v_cvt_pk_bf16_f32 v{t}, v{R}, v{R+4}",f"v_cvt_pk_bf16_f32 v{t+1}, v{R+8}, v{R+12}",f"ds_write_b64 v4, v[{t}:{t+1}] offset:{512*q}"]
    for _ in range(6): issue()
    done=-1; seen=set(); fill=[]; rdy={}
    def popfill(n):
        while n and fill and len(a.l)>=rdy[fill[0][0]]:
            t=fill.pop(0)[1]; a(t); n-=1
            if t.startswith('ds_'): ops.append(None)
    for i,(r,g,d) in enumerate(mf):
        fk,fh=('K',r,g),('H',r,d)
        while fk not in ops or fh not in ops: issue()
        w=max(ops.index(fk),ops.index(fh))
        if w>done:
            n=len(ops)-1-w; assert n<=15
            a(f"s_waitcnt lgkmcnt({n})"); done=w
        q=d+g; C=128+16*q; c=f"v[{C}:{C+15}]" if q in seen else "0"; seen.add(q)
        a(f"v_mfma_f32_32x32x16_bf16 v[{C}:{C+15}], v[{64+4*buf[fh]}:{67+4*buf[fh]}], v[{64+4*buf[fk]}:{67+4*buf[fk]}], {c}")
        if lastq[q]==i: rdy[q]=len(a.l)+13; fill+=[(q,t) for t in horner(q)]
        for f in (fk,fh):
            if last[f]==i: free.append(buf[f])
        k=6
        if nxt<len(need) and free and len(ops)-1-done<12: issue(); k=4
        popfill(k)
    a.stamp(5)
    while fill:
        if len(a.l)<rdy[fill[0][0]]: a("s_nop 0")
        popfill(99)
    a(f"v_lshlrev_b32 v5, 4, v0\ns_waitcnt lgkmcnt(0)\ns_barrier")
    for ch in range(4): a(f"ds_read_b128 v[{64+4*ch}:{67+4*ch}], v5 offset:{YB+4096*ch}")
    a("s_waitcnt lgkmcnt(0)")
    for j in range(4):
        for tt in range(2):
            for cp in range(2):
                for e in range(2):
                    ch=2*cp+e
                    unp(a,8,32+4*j+ch,tt); unp(a,12+e,64+4*ch+2*tt+(j>>1),j&1); unp(a,10+e,16+4*j+2*tt+cp,e)
                    a(f"v_fmac_f32 v{12+e}, s{DS[ch]}, v8")
                a(f"v_pk_fma_f32 v[10:11], v[12:13], v[{56+2*cp}:{57+2*cp}], v[10:11]\nv_cvt_pk_bf16_f32 v{96+4*j+2*tt+cp}, v10, v11")
        a(f"buffer_store_dwordx4 v[{96+4*j}:{99+4*j}], v3, s[52:55], s24 offen offset:{512*j} {WT}")
    a.flush(0,7); a("s_endpgm")
    f1a.gen(a)
```

```python
from common import *
def gen(a):
    a("f_prod:\ns_cmp_ge_u32 s2, 128\ns_cbranch_scc1 f_mod")
    a.ld(8,'u')
    a("s_lshl_b32 s3, s2, 4\nv_and_b32 v3, 7, v0\nv_lshrrev_b32 v4, 3, v0\nv_lshl_add_u32 v5, v3, 1, s3")
    a("v_mul_u32_u24 v6, 1280, v5\nv_lshl_add_u32 v6, v4, 3, v6\nv_lshlrev_b32 v7, 14, v4\nv_lshl_add_u32 v7, v5, 3, v7\ns_waitcnt lgkmcnt(0)")
    a.srd(8,2048*1280); a.srd(28,256); a.wsrd(12,4,X4,2048*1280); a.wsrd(16,4,ST1,16384); a.wsrd(64,4,FLG,4096)
    a("s_or_b32 s61, s2, s32\ns_cbranch_scc1 f_z1\nv_mov_b32 v8, 0\nv_mov_b32 v9, 0\nv_mov_b32 v10, 0\nv_mov_b32 v11, 0\nv_lshlrev_b32 v12, 4, v1")
    for j in range(4): a(f"buffer_store_dwordx4 v[8:11], v12, s[64:67], 0 offen offset:{1024*j} sc1")
    a("f_z1:")
    for p in range(5): a(f"buffer_load_dwordx2 v[{16+4*p}:{17+4*p}], v6, s[8:11], 0 offen offset:{256*p}\nbuffer_load_dwordx2 v[{18+4*p}:{19+4*p}], v6, s[8:11], 0 offen offset:{256*p+1280}")
    a("s_cmp_lg_u32 s61, 0\ns_cbranch_scc1 f_z2\ns_waitcnt vmcnt(10)")
    signal(a,28,"0",13,14)
    a("f_z2:\nv_mov_b32 v8, 0\nv_mov_b32 v9, 0\nv_mov_b32 v10, 0\nv_mov_b32 v11, 0\nv_mov_b32 v12, 0x3f803f80")
    for p in range(5):
        a(f"s_waitcnt vmcnt({8-p})\ns_mov_b32 s6, {p*32*16384}\nbuffer_store_dwordx4 v[{16+4*p}:{19+4*p}], v7, s[12:15], s6 offen sc1")
        for j in range(4): a(f"v_dot2c_f32_bf16 v{8+2*(j>>1)}, v12, v{16+4*p+j}\nv_dot2c_f32_bf16 v{9+2*(j>>1)}, v{16+4*p+j}, v{16+4*p+j}")
    a.stamp(1)
    a("v_lshlrev_b32 v13, 4, v0\ns_nop 2\nds_write_b128 v13, v[8:11]\ns_waitcnt lgkmcnt(0)\ns_barrier")
    a("s_cmp_lg_u32 s32, 0\ns_cbranch_scc1 f_st2\nv_and_b32 v13, 15, v0\nv_lshlrev_b32 v13, 3, v13")
    for j in range(32): a(f"ds_read_b64 v[{16+2*j}:{17+2*j}], v13 offset:{128*j}")
    a("s_waitcnt lgkmcnt(0)")
    for st in (32,16,8,4,2):
        for j in range(0,st,2): a(f"v_pk_add_f32 v[{16+j}:{17+j}], v[{16+j}:{17+j}], v[{16+j+st}:{17+j+st}]")
    lnstat(a,16,17)
    a("s_lshl_b32 s3, s3, 3\ns_mov_b64 exec, 0xffff\nbuffer_store_dwordx2 v[16:17], v13, s[16:19], s3 offen sc1\ns_mov_b64 exec, -1")
    pollgo(a,"f_g1",28,8,9)
    a("f_st2:\ns_waitcnt vmcnt(0)\ns_barrier\ns_branch f_sig")
    a("f_mod:")
    a.ld(8,'wmod'); a.ld(12,'c')
    a("s_sub_u32 s6, s2, 128\ns_cmp_ge_u32 s6, 60\ns_cselect_b32 s3, 1, 0\ns_mul_i32 s7, s3, 60\ns_sub_u32 s6, s6, s7\nv_lshrrev_b32 v3, 3, v0")
    a("s_mul_i32 s7, s3, 320\nv_add_u32 v4, s7, v3\nv_mul_u32_u24 v5, 7680, v4\nv_and_b32 v6, 7, v0\nv_lshl_add_u32 v5, v6, 4, v5")
    a("s_lshl_b32 s7, s6, 7\nv_lshlrev_b32 v4, 1, v4\ns_waitcnt lgkmcnt(0)")
    a.srd(8,640*7680); a.srd(12,1280); a.srd(28,256); a.wsrd(16,4,MODP,2*15360); a.wsrd(64,4,FLG,4096)
    for p in range(10): a(f"buffer_load_ushort v{10+p}, v4, s[12:15], 0 offen offset:{64*p}")
    for p in range(10): a(f"buffer_load_dwordx4 v[{32+4*p}:{35+4*p}], v5, s[8:11], s7 offen\ns_add_u32 s7, s7, {32*7680}")
    a("s_waitcnt vmcnt(10)")
    for p in range(10):
        a(f"v_lshlrev_b32 v{10+p}, 16, v{10+p}\nv_mul_f32 v7, 0xbfb8aa3b, v{10+p}\nv_exp_f32 v7, v7\ns_nop 0\nv_add_f32 v7, 1.0, v7\nv_rcp_f32 v7, v7\ns_nop 0\nv_mul_f32 v{10+p}, v{10+p}, v7")
        a.rbf(10+p)
    for p in range(10):
        a(f"s_waitcnt vmcnt({9-p})")
        for j in range(4):
            op = "v_mul_f32" if p==0 else "v_fmac_f32"
            a(f"v_lshlrev_b32 v7, 16, v{32+4*p+j}\nv_and_b32 v8, 0xffff0000, v{32+4*p+j}\n{op} v{20+2*j}, v{10+p}, v7\n{op} v{21+2*j}, v{10+p}, v8")
    a.stamp(1)
    a("v_lshlrev_b32 v7, 5, v0\nds_write_b128 v7, v[20:23]\nds_write_b128 v7, v[24:27] offset:16\ns_waitcnt lgkmcnt(0)\ns_barrier")
    a("s_cmp_lg_u32 s32, 0\ns_cbranch_scc1 f_md2\nv_lshlrev_b32 v7, 2, v0")
    for j in range(32): a(f"ds_read_b32 v{10+j}, v7 offset:{256*j}")
    a("s_waitcnt lgkmcnt(0)")
    for st in (16,8,4,2):
        for j in range(0,st,2): a(f"v_pk_add_f32 v[{10+j}:{11+j}], v[{10+j}:{11+j}], v[{10+j+st}:{11+j+st}]")
    a("v_add_f32 v10, v10, v11\ns_mul_i32 s3, s3, 15360\ns_lshl_b32 s6, s6, 8\ns_add_u32 s3, s3, s6\nbuffer_store_dword v10, v7, s[16:19], s3 offen sc1")
    pollgo(a,"f_g2",28,8,9)
    a("f_md2:")
    a("f_sig:\ns_cmp_lg_u32 s32, 0\ns_cbranch_scc1 f_prep")
    a("s_lshl_b32 s3, s2, 4"); signal(a,64,"s3",8,9)
    a("f_prep:"); a.stamp(2)
    a("s_cmp_ge_u32 s2, 205\ns_cbranch_scc1 f_pend\ns_cmp_ge_u32 s2, 135\ns_cbranch_scc1 f_w2")
    SC=8192; SB=9216; TB=25600
    a.ld(8,'w1'); a.ld(10,'w3')
    a("s_mul_i32 s3, s2, 2428\ns_lshr_b32 s3, s3, 16\ns_mul_i32 s6, s3, 27\ns_sub_u32 s6, s2, s6")
    a("s_and_b32 s33, s32, 1\ns_lshr_b32 s34, s32, 1\ns_lshl_b32 s35, s34, 3\nv_lshrrev_b32 v3, 3, v1\nv_add_u32 v3, s35, v3\nv_and_b32 v4, 7, v1")
    a(f"v_mul_u32_u24 v5, {8*3456}, v3\nv_lshl_add_u32 v5, v4, 4, v5\ns_mul_i32 s7, s3, {128*3456}\ns_lshl_b32 s36, s6, 7\ns_add_u32 s7, s7, s36")
    a("s_waitcnt lgkmcnt(0)\ns_cmp_eq_u32 s33, 1\ns_cselect_b32 s8, s10, s8\ns_cselect_b32 s9, s11, s9")
    a.srd(8,640*3456); a.wsrd(12,4,MODP,2*15360); a.wsrd(16,4,WP,108*40960); a.wsrd(20,4,SP,5*2*3456*4)
    for e in range(8): a(f"buffer_load_dwordx4 v[{16+4*e}:{19+4*e}], v5, s[8:11], s7 offen\ns_add_u32 s7, s7, 3456")
    a("s_cmp_lg_u32 s32, 0\ns_cbranch_scc1 f_pw_ok\ns_lshl_b32 s7, s3, 1\ns_add_u32 s7, s7, 158\nv_and_b32 v8, 1, v1\nv_mul_u32_u24 v8, 60, v8\nv_bfe_u32 v9, v1, 1, 1\nv_add3_u32 v8, v8, v9, s7\nv_bfe_u32 v9, v1, 2, 1\nv_mad_u32_u24 v10, v9, 10, v8")
    a("v_lshlrev_b32 v8, 4, v10"); pollf(a,"f_pw",64,[(8,0)],9)
    a("s_barrier")
    a(f"v_and_b32 v6, 127, v0\nv_lshlrev_b32 v6, 2, v6\ns_lshl_b32 s36, s3, 9\ns_mul_i32 s37, s34, 2560\ns_add_u32 s36, s36, {4*2560}\ns_sub_u32 s36, s36, s37")
    for p in range(2): a(f"buffer_load_dword v{8+p}, v6, s[12:15], s36 offen sc1\ns_add_u32 s36, s36, 15360")
    a("v_lshrrev_b32 v10, 1, v4\nv_and_b32 v11, 1, v4\nv_lshlrev_b32 v11, 4, v11\ns_lshl_b32 s36, s33, 3\nv_add_u32 v11, s36, v11\nv_lshl_add_u32 v13, v10, 5, v11")
    a("v_lshlrev_b32 v12, 13, v10\nv_lshl_add_u32 v12, v3, 9, v12\nv_add_u32 v11, v11, v4\nv_lshl_add_u32 v12, v11, 4, v12")
    a("s_cmp_eq_u32 s34, 0\ns_cselect_b32 s37, 1.0, 0\ns_waitcnt vmcnt(0)\nv_add_f32 v8, v8, v9"); a.rbf(8)
    a("v_add_f32 v8, s37, v8"); a.rbf(8)
    a(f"v_lshlrev_b32 v7, 2, v0\nds_write_b32 v7, v8 offset:{SC}\nv_lshlrev_b32 v9, 5, v3\ns_waitcnt lgkmcnt(0)\ns_barrier")
    a(f"ds_read_b128 v[48:51], v9 offset:{SC}\nds_read_b128 v[52:55], v9 offset:{SC+16}\nds_read_b128 v[56:59], v9 offset:{SC+512}\nds_read_b128 v[60:63], v9 offset:{SC+528}")
    a("v_mov_b32 v14, 0x3f803f80\ns_waitcnt lgkmcnt(0)")
    a.stamp(3)
    for i in range(8):
        O=80+4*i
        a(f"v_mov_b32 v{64+i}, 0")
        for e in range(0,8,2):
            for x in range(2):
                unp(a,8+x,16+4*(e+x)+(i>>1),i&1)
                a(f"{'v_mul_f32' if e+x==0 else 'v_fmac_f32'} v{72+i}, v{56+e+x}, v{8+x}")
            a(f"v_pk_mul_f32 v[8:9], v[{48+e}:{49+e}], v[8:9]\nv_cvt_pk_bf16_f32 v{O+e//2}, v8, v9\nv_dot2c_f32_bf16 v{64+i}, v14, v{O+e//2}")
        a(f"v_xor_b32 v15, {16*i}, v12\nds_write_b128 v15, v[{O}:{O+3}] offset:{TB}")
    a("v_lshlrev_b32 v9, 10, v3\nv_lshl_add_u32 v9, v13, 2, v9\ns_nop 1")
    a(f"ds_write_b128 v9, v[64:67] offset:{SB}\nds_write_b128 v9, v[68:71] offset:{SB+16}\nds_write_b128 v9, v[72:75] offset:{SB+512}\nds_write_b128 v9, v[76:79] offset:{SB+528}")
    a("v_bfe_u32 v8, v1, 4, 1\ns_lshl_b32 s36, s32, 1\nv_add_u32 v8, s36, v8\nv_xor_b32 v8, v8, v1\nv_lshlrev_b32 v8, 4, v8\ns_lshl_b32 s36, s32, 13\nv_add_u32 v8, s36, v8\nv_lshlrev_b32 v9, 4, v1")
    a(f"s_lshl_b32 s36, s6, 2\ns_add_u32 s36, s36, s32\ns_mul_i32 s36, s36, 40960\ns_lshl_b32 s37, s3, 13\ns_add_u32 s36, s36, s37\ns_add_u32 s37, s36, 4096\ns_waitcnt lgkmcnt(0)\ns_barrier")
    for j in range(8): a(f"ds_read_b128 v[{32+4*j}:{35+4*j}], v8 offset:{TB+1024*j}")
    for j in range(8): a(f"s_waitcnt lgkmcnt({7-j})\nbuffer_store_dwordx4 v[{32+4*j}:{35+4*j}], v9, s[16:19], s{36+(j>>2)} offen offset:{1024*(j&3)} {WT}")
    for j in range(16): a(f"ds_read_b32 v{16+j}, v7 offset:{SB+1024*j}")
    a(f"s_lshl_b32 s3, s3, 1\ns_add_u32 s3, s3, s34\ns_mul_i32 s3, s3, {3456*4}\ns_lshl_b32 s6, s6, 9\ns_add_u32 s3, s3, s6\ns_waitcnt lgkmcnt(0)")
    for st in (8,4,2,1):
        for j in range(st): a(f"v_add_f32 v{16+j}, v{16+j}, v{16+j+st}")
    a("buffer_store_dword v16, v6, s[20:23], s3 offen"); a.flush(8,5); a("s_endpgm")
    a("f_w2:")
    a.ld(8,'w2')
    a("s_sub_u32 s2, s2, 135\ns_mul_i32 s3, s2, 13108\ns_lshr_b32 s3, s3, 16\ns_mul_i32 s6, s3, 5\ns_sub_u32 s6, s2, s6")
    a("s_lshl_b32 s3, s3, 4\ns_lshl_b32 s6, s6, 4\nv_lshrrev_b32 v3, 4, v0\nv_add_u32 v3, s3, v3\nv_and_b32 v4, 15, v0\nv_add_u32 v4, s6, v4")
    a("v_lshrrev_b32 v5, 1, v3\nv_and_b32 v6, 1, v3\nv_lshlrev_b32 v6, 2, v6\nv_lshl_add_u32 v5, v5, 4, v6\nv_mul_u32_u24 v5, 1280, v5\nv_lshl_add_u32 v5, v4, 4, v5\ns_waitcnt lgkmcnt(0)")
    a.srd(8,1728*1280); a.wsrd(16,4,W2P,8*54*5120)
    a("s_movk_i32 s7, 10240")
    for e in range(8): a(f"buffer_load_dwordx4 v[{16+4*e}:{19+4*e}], v5, s[8:11], {'s7' if e>>2 else '0'} offen offset:{1280*(e&3)}")
    a("v_lshrrev_b32 v7, 2, v3\nv_mul_u32_u24 v7, 5120, v7\nv_and_b32 v8, 3, v3\nv_lshl_add_u32 v7, v8, 8, v7")
    for x in range(2):
        a(f"v_lshl_add_u32 v8, v4, 1, {x}\nv_mul_u32_u24 v9, 3277, v8\nv_lshrrev_b32 v9, 16, v9\nv_mul_u32_u24 v10, 20, v9\nv_sub_u32 v8, v8, v10")
        a(f"v_mul_u32_u24 v10, 13108, v8\nv_lshrrev_b32 v10, 16, v10\nv_mul_u32_u24 v11, 5, v10\nv_sub_u32 v8, v8, v11")
        a(f"v_mul_u32_u24 v9, {54*5120}, v9\nv_lshl_add_u32 v9, v8, 10, v9\nv_lshl_add_u32 v9, v10, 6, v9\nv_add_u32 v{12+x}, v9, v7")
    a("s_mov_b32 s36, 0x05040100\ns_mov_b32 s37, 0x07060302\nv_cmp_gt_u32 vcc, 216, v3\ns_and_saveexec_b64 s[6:7], vcc\ns_waitcnt vmcnt(0)")
    a.stamp(3)
    for i in range(8):
        O=48+4*i
        for e in range(0,8,2): a(f"v_perm_b32 v{O+e//2}, v{16+4*(e+1)+(i>>1)}, v{16+4*e+(i>>1)}, s{36+(i&1)}")
        a(f"buffer_store_dwordx4 v[{O}:{O+3}], v{12+(i>>2)}, s[16:19], 0 offen offset:{16*(i&3)}")
    a.flush(16,5)
    a("f_pend:\ns_endpgm")
```

```python
from common import *
R=5; EX=R*16384; LDS3=EX+2048
PD=12
X=os.environ.get('X','')
WT3=os.environ.get('WT3','')
def gen(a):
    a.head("gemm1_kernel")
    a("s_cmp_ge_u32 s2, 256\ns_cbranch_scc1 k3_end")
    a.ld(4,'ws'); a.ld(28,'dbg'); a.stamp(0)
    a("s_cmp_lt_u32 s2, 32\ns_cbranch_scc1 k3_st\ns_sub_u32 s2, s2, 32")
    a("v_and_b32 v1, 63, v0\nv_lshrrev_b32 v2, 6, v0\ns_and_b32 s3, s2, 7\nv_readfirstlane_b32 s32, v2\ns_lshr_b32 s6, s2, 3")
    a("s_lshr_b32 s7, s3, 1\ns_mul_i32 s7, s7, 28\ns_add_u32 s7, s7, s6\ns_and_b32 s3, s3, 1\ns_lshl_b32 s3, s3, 3\ns_and_b32 s6, s7, 7\ns_add_u32 s33, s3, s6\ns_lshr_b32 s34, s7, 3")
    a("s_lshl_b32 s35, s34, 3\ns_add_u32 s35, s35, s32\ns_min_u32 s36, s35, 107\ns_mul_i32 s36, s36, 40960")
    a("s_lshl_b32 s37, s32, 15\ns_lshl_b32 s3, s33, 10\ns_add_u32 s37, s37, s3\ns_lshl_b32 s38, s32, 11")
    a("v_lshlrev_b32 v3, 4, v1\ns_waitcnt lgkmcnt(0)")
    a.wsrd(8,4,X14,2048*1280); a.wsrd(12,4,WP,108*40960); a.wsrd(16,4,SP,5*2*3456*4); a.wsrd(20,4,ACT8,216*32768); a.wsrd(24,4,ST2,16384); a.srd(28,256)
    a(f"v_and_b32 v4, 255, v0\nv_lshlrev_b32 v4, 2, v4\ns_lshr_b32 s3, s32, 2\ns_mul_i32 s3, s3, {3456*4}\ns_lshl_b32 s6, s34, 10\ns_add_u32 s3, s3, s6")
    for p in range(5): a(f"buffer_load_dword v{16+p}, v4, s[16:19], s3 offen\ns_add_u32 s3, s3, {2*3456*4}")
    def body(stats):
        ops=[]
        def dma(c,j):
            a(f"s_add_u32 m0, s38, {(c%R)*16384+1024*j}\ns_add_u32 s3, s37, {c*16*16384+16384*j}\nbuffer_load_dwordx4 v{29 if 'd' in X and c>2 else 3}, s[8:11], s3 offen lds"); ops.append(('D',c))
        def wld(s):
            b=4*(s%16)
            if s%4==0: a(f"s_add_u32 s39, s36, {1024*s}")
            a(f"buffer_load_dwordx4 a[{b}:{b+3}], v{29 if 'w' in X and s>11 else 3}, s[12:15], s39 offen offset:{1024*(s%4)}"); ops.append(('W',s))
        done=[-1]
        def wait(k):
            i=len(ops)-1-ops[::-1].index(k)
            if i>done[0]: a(f"s_waitcnt vmcnt({len(ops)-1-i})"); done[0]=i
        def xrd(s,n):
            c=s//4; sl=c%R; base=(8 if sl<3 else 12)+n; off=(sl if sl<3 else sl-3)*16384+4096*(s%4); d=32+16*(s&1)+4*n
            a(f"ds_read_b64 v[{d}:{d+1}], v{base} offset:{off}\nds_read_b64 v[{d+2}:{d+3}], v{base} offset:{off+1024}")
        for c in range(PD//4):
            dma(c,0); dma(c,1)
            for s in range(4*c,4*c+4): wld(s)
        a("v_and_b32 v5, 31, v1\nv_lshrrev_b32 v6, 5, v1\nv_lshlrev_b32 v7, 11, v6\nv_lshl_add_u32 v7, v5, 3, v7\ns_and_b32 s6, s32, 3")
        for n in range(4): a(f"s_xor_b32 s{40+n}, s6, {n}\ns_lshl_b32 s7, s{40+n}, 8\nv_add_u32 v{8+n}, s7, v7\nv_add_u32 v{12+n}, {3*16384}, v{8+n}")
        a("v_and_b32 v24, 1, v1\nv_lshlrev_b32 v24, 3, v24\ns_lshl_b32 s46, s33, 4\nv_add_u32 v26, s46, v24\nv_lshlrev_b32 v27, 3, v5\ns_lshl_b32 s47, s33, 10")
        wait(('D',0))
        a(f"v_add_f32 v16, v16, v17\nv_add_f32 v18, v18, v19\nv_add_f32 v16, v16, v20\nv_lshlrev_b32 v4, 2, v0\nv_add_f32 v16, v16, v18\nv_add_u32 v4, {EX}, v4\nds_write_b32 v4, v16\ns_barrier")
        a.stamp(1); a.cyc(0)
        for n in range(4): xrd(0,n)
        for s in range(40):
            c=s//4
            if s==20: a.stamp(2)
            if s%4==3 and c<9: wait(('D',c+1)); a("s_barrier")
            wait(('W',s))
            for n in range(4):
                a(f"s_waitcnt lgkmcnt({6 if s<39 else 6-2*n})")
                x=32+16*(s&1)+4*n; C=64+16*n; b=4*(s%16)
                if 'm' not in X: a(f"v_mfma_f32_32x32x16_bf16 v[{C}:{C+15}], a[{b}:{b+3}], v[{x}:{x+3}], {'0' if s==0 else 'v[%d:%d]'%(C,C+15)}")
                if s<39: xrd(s+1,n)
                if n==0 and s==29: a("buffer_load_dword v25, v24, s[28:31], s46 offen sc1"); ops.append(('P',0))
                if n==0 and s==33:
                    wait(('P',0)); a("v_cmp_eq_u32 vcc, 1, v25\ns_nop 4\ns_cmp_eq_u64 vcc, -1\ns_cbranch_scc1 k3_p_ok"); pollf(a,"k3_p",28,[(26,0)],25)
                if s==34: a(f"s_lshl_b32 s7, s{40+n}, 8\ns_add_u32 s7, s7, s47\nbuffer_load_dwordx2 v[{16+2*n}:{17+2*n}], v27, s[24:27], s7 offen sc1")
                if n==1 and s+PD<40 and s%2==0: dma(c+PD//4,(s%4)//2)
                if n==2 and s+PD<40: wld(s+PD)
    body(False)
    a("k3_ep:"); a.stamp(3); a.cyc(1)
    a("s_cmp_ge_u32 s35, 108\ns_cbranch_scc1 k3_end")
    a(f"s_lshl_b32 s7, s32, 7\ns_add_u32 s7, s7, {EX}\nv_lshlrev_b32 v4, 4, v6\nv_add_u32 v4, s7, v4")
    for q in range(4): a(f"ds_read_b128 v[{32+4*q}:{35+4*q}], v4 offset:{32*q}\nds_read_b128 v[{48+4*q}:{51+4*q}], v4 offset:{1024+32*q}")
    a("v_lshlrev_b32 v7, 15, v6\nv_lshl_add_u32 v7, v5, 4, v7\ns_lshl_b32 s35, s35, 16\ns_lshl_b32 s33, s33, 11\ns_add_u32 s35, s35, s33")
    a("s_mov_b32 s44, 0xbfb8aa3b\ns_mov_b32 s45, 0xbfb8aa3b\ns_waitcnt vmcnt(0) lgkmcnt(0)")
    for n in range(4):
        st=16+2*n
        for ap in range(2):
            for bp in range(2):
                g=64+16*n+8*ap+2*bp; u=g+4; sg=32+8*ap+2*bp; t=8+4*bp
                a(f"v_pk_fma_f32 v[{t}:{t+1}], v[{sg}:{sg+1}], v[{st}:{st+1}], v[{sg+16}:{sg+17}] op_sel_hi:[1,0,1]")
                a(f"v_pk_fma_f32 v[{t+2}:{t+3}], v[{sg+4}:{sg+5}], v[{st}:{st+1}], v[{sg+20}:{sg+21}] op_sel_hi:[1,0,1]")
                a(f"v_pk_fma_f32 v[{g}:{g+1}], v[{g}:{g+1}], v[{st}:{st+1}], v[{t}:{t+1}] op_sel:[0,1,0]")
                a(f"v_pk_fma_f32 v[{u}:{u+1}], v[{u}:{u+1}], v[{st}:{st+1}], v[{t+2}:{t+3}] op_sel:[0,1,0]")
                a(f"v_pk_mul_f32 v[{t}:{t+1}], v[{g}:{g+1}], s[44:45]\nv_pk_mul_f32 v[{u}:{u+1}], v[{u}:{u+1}], v[{g}:{g+1}]\nv_exp_f32 v{t}, v{t}\nv_exp_f32 v{t+1}, v{t+1}")
            for bp in range(2):
                t=8+4*bp
                a(f"v_pk_add_f32 v[{t}:{t+1}], v[{t}:{t+1}], 1.0 op_sel_hi:[1,0]\nv_rcp_f32 v{t}, v{t}\nv_rcp_f32 v{t+1}, v{t+1}")
            for bp in range(2):
                u=64+16*n+8*ap+2*bp+4; t=8+4*bp
                a(f"v_pk_mul_f32 v[{u}:{u+1}], v[{u}:{u+1}], v[{t}:{t+1}]\nv_cvt_pk_bf16_f32 v{24+4*(n&1)+2*ap+bp}, v{u}, v{u+1}")
        o=24+4*(n&1)
        a(f"s_lshl_b32 s7, s{40+n}, 9\ns_add_u32 s7, s7, s35\nbuffer_store_dwordx4 v[{o}:{o+3}], v7, s[20:23], s7 offen {WT3}")
    a.flush(0,5)
    a("k3_end:\ns_endpgm\nk3_st:")
    a("v_and_b32 v3, 31, v0\nv_lshrrev_b32 v4, 5, v0\nv_lshlrev_b32 v4, 14, v4\nv_lshl_add_u32 v3, v3, 4, v4\ns_lshl_b32 s3, s2, 9\ns_mov_b32 s6, s3\nv_lshrrev_b32 v2, 6, v0\ns_waitcnt lgkmcnt(0)")
    a.wsrd(8,4,X14,2048*1280); a.wsrd(24,4,ST2,16384); a.srd(28,256)
    for p in range(10): a(f"buffer_load_dwordx4 v[{16+4*p}:{19+4*p}], v3, s[8:11], s6 offen\ns_add_u32 s6, s6, {16*16384}")
    a("v_mov_b32 v8, 0\nv_mov_b32 v9, 0\nv_mov_b32 v10, 0\nv_mov_b32 v11, 0\nv_mov_b32 v12, 0x3f803f80\nv_readfirstlane_b32 s32, v2")
    for p in range(10):
        a(f"s_waitcnt vmcnt({9-p})")
        for j in range(4): a(f"v_dot2c_f32_bf16 v{8+2*(j>>1)}, v12, v{16+4*p+j}\nv_dot2c_f32_bf16 v{9+2*(j>>1)}, v{16+4*p+j}, v{16+4*p+j}")
    a("v_lshlrev_b32 v13, 4, v0\ns_nop 2\nds_write_b128 v13, v[8:11]\ns_waitcnt lgkmcnt(0)\ns_barrier\ns_cmp_lg_u32 s32, 0\ns_cbranch_scc1 k3_end\nv_lshlrev_b32 v13, 3, v0")
    for j in range(16): a(f"ds_read_b64 v[{16+2*j}:{17+2*j}], v13 offset:{512*j}")
    a("s_waitcnt lgkmcnt(0)")
    for st in (16,8,4,2):
        for j in range(0,st,2): a(f"v_pk_add_f32 v[{16+j}:{17+j}], v[{16+j}:{17+j}], v[{16+j+st}:{17+j+st}]")
    lnstat(a,16,17)
    a("v_mul_f32 v16, v16, v17\nv_sub_f32 v16, 0, v16\nbuffer_store_dwordx2 v[16:17], v13, s[24:27], s3 offen sc1\ns_lshl_b32 s3, s2, 3\ns_waitcnt vmcnt(0)")
    signal(a,28,"s3",8,9)
    a.stamp(1); a.flush(8,2)
    a("s_endpgm")
```

```python
from common import *
D=5; LDS4=4*15*1024+512
def gen(a):
    a.head("gemm2_kernel")
    a("s_cmp_ge_u32 s2, 256\ns_cbranch_scc1 k4_end")
    a.ld(4,'ws'); a.ld(24,'out'); a.stamp(0)
    a("v_and_b32 v1, 63, v0\nv_lshrrev_b32 v2, 6, v0\ns_and_b32 s3, s2, 7\nv_readfirstlane_b32 s32, v2\ns_lshr_b32 s6, s2, 3")
    a("s_lshr_b32 s7, s3, 1\ns_lshl_b32 s7, s7, 3\ns_and_b32 s33, s6, 7\ns_add_u32 s33, s33, s7\ns_and_b32 s3, s3, 1\ns_lshl_b32 s3, s3, 2\ns_lshr_b32 s34, s6, 3\ns_add_u32 s34, s34, s3")
    a(f"s_mul_i32 s35, s34, 54\ns_add_u32 s35, s35, s32\ns_mul_i32 s35, s35, 5120\ns_lshl_b32 s36, s32, 17\ns_lshl_b32 s3, s33, 10\ns_add_u32 s36, s36, s3")
    a("v_lshlrev_b32 v3, 4, v1\nv_add_u32 v4, 0x1000, v3\nv_and_b32 v5, 15, v1\nv_lshrrev_b32 v6, 4, v1\nv_lshlrev_b32 v7, 15, v6\nv_lshl_add_u32 v7, v5, 4, v7")
    for n in range(4): a(f"s_xor_b32 s7, s32, {n}\ns_lshl_b32 s7, s7, 8\nv_add_u32 v{8+n}, s7, v7")
    a("s_waitcnt lgkmcnt(0)")
    a.wsrd(8,4,ACT8,216*32768); a.wsrd(12,4,W2P,8*54*5120); a.wsrd(16,4,MODP,2*15360); a.wsrd(20,4,X14,2048*1280); a.srd(24,2048*1280)
    def ld(i):
        b=36*(i%D)
        for m in range(5): a(f"buffer_load_dwordx4 a[{b+4*m}:{b+4*m+3}], v{3 if m<4 else 4}, s[12:15], s35 offen offset:{1024*(m&3)}")
        for n in range(4): a(f"buffer_load_dwordx4 a[{b+20+4*n}:{b+23+4*n}], v{8+n}, s[8:11], s36 offen")
        a(f"s_add_u32 s35, s35, {4*5120}\ns_add_u32 s36, s36, {16*32768}")
    ld(0)
    a(f"v_lshlrev_b32 v12, 2, v0\ns_mul_i32 s3, s34, 320\ns_add_u32 s3, s3, {5*2560}")
    for p in range(2): a(f"buffer_load_dword v{16+p}, v12, s[16:19], s3 offen\ns_add_u32 s3, s3, 15360")
    a(f"v_mul_u32_u24 v13, {5*16384}, v6\nv_lshl_add_u32 v13, v5, 3, v13\ns_mul_i32 s3, s34, {20*16384}\ns_lshl_b32 s6, s33, 9\ns_add_u32 s3, s3, s6\ns_lshl_b32 s6, s32, 7\ns_add_u32 s3, s3, s6")
    for m in range(5): a(f"buffer_load_dwordx2 v[{20+2*m}:{21+2*m}], v13, s[20:23], s3 offen\ns_add_u32 s3, s3, 16384")
    for i in range(1,D): ld(i)
    for i in range(14):
        b=36*(i%D); rem=min(D-1,13-i)
        for n in range(4):
            a(f"s_waitcnt vmcnt({9*rem+3-n+(7 if i==0 else 0)})")
            for m in range(5):
                C=32+20*n+4*m
                a(f"v_mfma_f32_16x16x32_bf16 v[{C}:{C+3}], a[{b+4*m}:{b+4*m+3}], a[{b+20+4*n}:{b+23+4*n}], {'0' if i==0 else 'v[%d:%d]'%(C,C+3)}")
        if i==0: a.stamp(1); a.cyc(0)
        if i==7: a.stamp(2)
        if i==13: a.stamp(3); a.cyc(1)
        if i+D<14: ld(i+D)
    a("v_add_f32 v16, v16, v17\ns_nop 1"); a.rbf(16)
    a("v_cmp_gt_u32 vcc, 80, v0\ns_and_saveexec_b64 s[6:7], vcc\nds_write_b32 v12, v16 offset:61440\ns_mov_b64 exec, -1")
    a("s_mul_i32 s3, s32, 15360\nv_add_u32 v14, s3, v3")
    for n in range(1,4):
        for m in range(5): C=32+20*n+4*m; a(f"ds_write_b128 v14, v[{C}:{C+3}] offset:{1024*(5*(n-1)+m)}")
    a("v_mul_u32_u24 v15, 80, v6\ns_waitcnt lgkmcnt(0)\ns_barrier")
    for n in range(1,4):
        a(f"s_xor_b32 s7, s32, {n}\ns_mul_i32 s7, s7, 15360\nv_add_u32 v14, s7, v3")
        for m in range(5): C=32+20*n+4*m; a(f"ds_read_b128 v[{C}:{C+3}], v14 offset:{1024*(5*(n-1)+m)}")
        if n==2: a("s_waitcnt lgkmcnt(5)"); [a(f"v_pk_add_f32 v[{32+j}:{33+j}], v[{32+j}:{33+j}], v[{52+j}:{53+j}]") for j in range(0,20,2)]
    for m in range(5): a(f"ds_read_b128 v[{112+4*m}:{115+4*m}], v15 offset:{61440+16*m}")
    a("s_waitcnt lgkmcnt(5)")
    for j in range(0,20,2): a(f"v_pk_add_f32 v[{72+j}:{73+j}], v[{72+j}:{73+j}], v[{92+j}:{93+j}]")
    for j in range(0,20,2): a(f"v_pk_add_f32 v[{32+j}:{33+j}], v[{32+j}:{33+j}], v[{72+j}:{73+j}]")
    a("v_mul_u32_u24 v13, 1280, v5\nv_mul_u32_u24 v14, 40, v6\nv_add_u32 v13, v13, v14")
    a(f"s_lshl_b32 s3, s33, 2\ns_add_u32 s3, s3, s32\ns_mul_i32 s3, s3, {16*1280}\ns_mul_i32 s6, s34, 160\ns_add_u32 s3, s3, s6\ns_waitcnt lgkmcnt(0)")
    for j in range(10):
        a(f"v_lshlrev_b32 v16, 16, v{20+j}\nv_and_b32 v17, 0xffff0000, v{20+j}\nv_pk_fma_f32 v[16:17], v[{32+2*j}:{33+2*j}], v[{112+2*j}:{113+2*j}], v[16:17]\nv_cvt_pk_bf16_f32 v{52+j}, v16, v17")
    a("buffer_store_dwordx4 v[52:55], v13, s[24:27], s3 offen\nbuffer_store_dwordx4 v[56:59], v13, s[24:27], s3 offen offset:16\nbuffer_store_dwordx2 v[60:61], v13, s[24:27], s3 offen offset:32")
    a.flush(0,5)
    a("k4_end:\ns_endpgm")
```

```python
import sys; sys.path.insert(0,'g')
from common import *
import f1,k3,k4
ref=open(f'cdna_kernels/{NAME}.s.ref').read().split('\n')
hdr=[l for l in ref if l.startswith(';') and '@launch' not in l and 'Override' not in l and 'grid=ceil' not in l]
a=A()
for k in (f1,k3,k4): k.gen(a)
out='\n'.join(hdr)+'\n'
out+=f"""; @launch kernel=front_kernel grid=({f1.NWG},1,1) block=(256,1,1) lds={f1.LDS}
; @launch kernel=gemm1_kernel grid=(256,1,1) block=(512,1,1) lds={k3.LDS3}
; @launch kernel=gemm2_kernel grid=(256,1,1) block=(256,1,1) lds={k4.LDS4}
.amdgcn_target "amdgcn-amd-amdhsa--gfx950"
.text
"""+a.txt()+'.section .rodata,"a"\n'+desc("front_kernel",256,256,80)+desc("gemm1_kernel",192,128)+desc("gemm2_kernel",132+36*k4.D,132)
open(sys.argv[1] if len(sys.argv)>1 else f'cdna_kernels/{NAME}.s','w').write(out)
```

```python
import os
DBG=int(os.environ.get('DBG','0'))
NAME="adaLN_cond__ssm_conv_s4d__glu_gated_swiglu__prompt"
MODP=0x0; ST1=0x10000; SP=0x20000; X4=0x100000; KX=0x400000; X14=0x700000; WP=0xA00000; W2P=0xF00000; ACT8=0x1200000
ARG=dict(u=0,lar=8,ai=16,cr=24,ci=32,ldt=40,dsk=48,w1=64,w3=72,w2=80,c=88,wmod=96,out=104,dbg=112,ws=120)
class A:
    def __init__(s): s.l=[]
    def __call__(s,t):
        for x in t.strip('\n').split('\n'): s.l.append('    '+x.strip() if not x.strip().endswith(':') else x.strip())
    def ld(s,d,arg): s(f"s_load_dwordx2 s[{d}:{d+1}], s[0:1], {ARG[arg]}")
    def srd(s,d,size):
        s(f"s_mov_b32 s{d+2}, {size}\ns_mov_b32 s{d+3}, 0x00020000")
    def wsrd(s,d,b,off,size):
        s(f"s_add_u32 s{d}, s{b}, {off}\ns_addc_u32 s{d+1}, s{b+1}, 0"); s.srd(d,size)
    def rbf(s,v):
        s(f"v_cvt_pk_bf16_f32 v{v}, v{v}, v{v}\nv_lshlrev_b32 v{v}, 16, v{v}")
    def stamp(s,i):
        if DBG: s(f"s_memrealtime s[{88+2*i}:{89+2*i}]")
    def cyc(s,k):
        if DBG: s(f"s_memtime s[{76+2*k}:{77+2*k}]"); s.c=1
    def flush(s,slot,n):
        if not DBG: return
        s.stamp(n-1)
        s("s_mov_b64 exec, -1\ns_load_dwordx2 s[84:85], s[0:1], 120\nv_mov_b32 v1, 0\nv_cmp_eq_u32 vcc, 0, v0\ns_and_saveexec_b64 s[86:87], vcc\ns_waitcnt vmcnt(0) lgkmcnt(0)")
        s.wsrd(84,84,0x1F00000+512*s.kid,256)
        if getattr(s,'c',0):
            s.c=0; s("s_sub_u32 s76, s78, s76\nv_mov_b32 v2, s76\nv_not_b32 v3, v2\nbuffer_atomic_umax v2, v1, s[84:87], 0 offen offset:240\nbuffer_atomic_umax v3, v1, s[84:87], 0 offen offset:244")
        for i in range(n):
            s(f"v_mov_b32 v2, s{88+2*i}\nv_not_b32 v3, v2\nbuffer_atomic_umax v2, v1, s[84:87], 0 offen offset:{8*(slot+i)}\nbuffer_atomic_umax v3, v1, s[84:87], 0 offen offset:{8*(slot+i)+4}\ns_waitcnt vmcnt(0)")
    def head(s,k):
        s.kid=getattr(s,'kid',-1)+1
        s.l+= [f".globl {k}",".p2align 8",f".type {k},@function",f"{k}:"]
    def txt(s): return '\n'.join(s.l)+'\n'
def desc(k,vg,acc,sg=96):
    if DBG: sg=102
    return f""".p2align 6
.amdhsa_kernel {k}
  .amdhsa_next_free_vgpr {vg}
  .amdhsa_next_free_sgpr {sg}
  .amdhsa_accum_offset {acc}
  .amdhsa_group_segment_fixed_size 0
  .amdhsa_kernarg_size 128
  .amdhsa_user_sgpr_count 2
  .amdhsa_user_sgpr_kernarg_segment_ptr 1
  .amdhsa_system_sgpr_workgroup_id_x 1
.end_amdhsa_kernel
"""
LOG2E="0x3fb8aa3b"

def unp(a,d,s,hi): a(f"v_and_b32 v{d}, 0xffff0000, v{s}" if hi else f"v_lshlrev_b32 v{d}, 16, v{s}")
def cexp(a,dr,di,tau,va,vb,t):
    if tau is None: a(f"v_exp_f32 v{t}, v{va}\nv_fract_f32 v{t+1}, v{vb}")
    else: a(f"v_mul_f32 v{t}, {tau}, v{va}\nv_mul_f32 v{t+1}, {tau}, v{vb}\nv_exp_f32 v{t}, v{t}\nv_fract_f32 v{t+1}, v{t+1}")
    a(f"v_cos_f32 v{dr}, v{t+1}\nv_sin_f32 v{di}, v{t+1}\ns_nop 0\nv_mul_f32 v{dr}, v{dr}, v{t}\nv_mul_f32 v{di}, v{di}, v{t}")
def lnstat(a,s,q):
    a(f"v_mul_f32 v{s}, 0x3acccccd, v{s}\nv_mul_f32 v{q}, 0x3acccccd, v{q}\nv_fma_f32 v{q}, -v{s}, v{s}, v{q}\nv_max_f32 v{q}, 0, v{q}")
    a.rbf(s); a.rbf(q)
    a(f"v_add_f32 v{q}, 0x3727c5ac, v{q}"); a.rbf(q)
    a(f"v_sqrt_f32 v{q}, v{q}\ns_nop 0"); a.rbf(q)
    a(f"v_rcp_f32 v{q}, v{q}\ns_nop 0")
def signal(a,srd,soff,va,vb):
    a(f"v_mov_b32 v{va}, 0\nv_mov_b32 v{vb}, 1\ns_mov_b64 exec, 1\nbuffer_store_dword v{vb}, v{va}, s[{srd}:{srd+3}], {soff} offen sc1\ns_mov_b64 exec, -1")
def poll(a,lab,srd,voff,vexp,vt,soff="0"):
    a(f"{lab}:\nbuffer_load_dword v{vt}, v{voff}, s[{srd}:{srd+3}], {soff} offen sc1\ns_waitcnt vmcnt(0)\nv_and_b32 v{vt}, v{vt}, v{vexp}\nv_cmp_eq_u32 vcc, v{vt}, v{vexp}\ns_nop 4\ns_cmp_eq_u64 vcc, -1\ns_cbranch_scc1 {lab}_ok\ns_sleep {SLP}\ns_branch {lab}\n{lab}_ok:")
ST2=0x18000
WT=os.environ.get('WT','sc1')
SLP=int(os.environ.get('SLP','4'))
def bmask(a,vb,vo,vm):
    a(f"v_and_b32 v{vm}, 3, v{vb}\nv_lshlrev_b32 v{vm}, 3, v{vm}\nv_lshlrev_b32_e64 v{vm}, v{vm}, 1\nv_and_b32 v{vo}, 0xfc, v{vb}")
FLG=0x1C000
def pollgo(a,lab,srd,v0_,vt):
    a(f"v_mov_b32 v{v0_}, 0\n{lab}:\nbuffer_load_dword v{vt}, v{v0_}, s[{srd}:{srd+3}], 0 offen sc1\ns_waitcnt vmcnt(0)\nv_readfirstlane_b32 s60, v{vt}\ns_cmp_lg_u32 s60, 0\ns_cbranch_scc1 {lab}_ok\ns_sleep 2\ns_branch {lab}\n{lab}_ok:")
def pollf(a,lab,srd,offs,vt):
    a(f"{lab}:")
    for i,(v,o) in enumerate(offs): a(f"buffer_load_dword v{vt+i}, v{v}, s[{srd}:{srd+3}], 0 offen offset:{o} sc1")
    a("s_waitcnt vmcnt(0)")
    for i in range(1,len(offs)): a(f"v_and_b32 v{vt}, v{vt}, v{vt+i}")
    a(f"v_cmp_eq_u32 vcc, 1, v{vt}\ns_nop 4\ns_cmp_eq_u64 vcc, -1\ns_cbranch_scc1 {lab}_ok\ns_sleep {SLP}\ns_branch {lab}\n{lab}_ok:")
def ipf(a,lab,start,step,n):
    a(f"s_getpc_b64 s[8:9]\n{lab}:\ns_sub_u32 s8, s8, {lab}-{start}\ns_subb_u32 s9, s9, 0\nv_lshlrev_b32 v3, 4, v0\ns_mov_b32 s10, code_end-{start}-16")
    for j in range(n): a(f"v_min_u32 v6, s10, v3\nv_mov_b32 v5, s9\nv_add_co_u32 v4, vcc, s8, v6\nv_addc_co_u32 v5, vcc, 0, v5, vcc\nglobal_load_dwordx4 v[{16+4*j}:{19+4*j}], v[4:5], off\nv_add_u32 v3, {step}, v3")
X14=X4
```

```python
from common import *
def gen(a):
    a("f_prod:\ns_setprio 3\ns_cmp_ge_u32 s2, 128\ns_cbranch_scc1 f_mod")
    a.ld(8,'u')
    a("s_lshl_b32 s3, s2, 4\nv_and_b32 v3, 7, v0\nv_lshrrev_b32 v4, 3, v0\nv_lshl_add_u32 v5, v3, 1, s3")
    a("v_mul_u32_u24 v6, 1280, v5\nv_lshl_add_u32 v6, v4, 3, v6\nv_lshlrev_b32 v7, 14, v4\nv_lshl_add_u32 v7, v5, 3, v7\ns_waitcnt lgkmcnt(0)")
    a.srd(8,2048*1280); a.srd(28,256); a.wsrd(12,4,X4,2048*1280); a.wsrd(16,4,ST1,16384); a.wsrd(64,4,FLG,8192)
    a("s_or_b32 s61, s2, s32\ns_cbranch_scc1 f_z1\nv_mov_b32 v8, 0\nv_mov_b32 v9, 0\nv_mov_b32 v10, 0\nv_mov_b32 v11, 0\nv_lshlrev_b32 v12, 4, v1")
    for j in range(4): a(f"buffer_store_dwordx4 v[8:11], v12, s[64:67], 0 offen offset:{1024*j} sc1")
    a("s_movk_i32 s6, 4096")
    for j in range(4): a(f"buffer_store_dwordx4 v[8:11], v12, s[64:67], s6 offen offset:{1024*j} sc1")
    a("f_z1:")
    for p in range(5): a(f"buffer_load_dwordx2 v[{16+4*p}:{17+4*p}], v6, s[8:11], 0 offen offset:{256*p}\nbuffer_load_dwordx2 v[{18+4*p}:{19+4*p}], v6, s[8:11], 0 offen offset:{256*p+1280}")
    a("s_cmp_lg_u32 s61, 0\ns_cbranch_scc1 f_z2\ns_waitcnt vmcnt(10)")
    signal(a,28,"0",13,14)
    a("f_z2:\nv_mov_b32 v8, 0\nv_mov_b32 v9, 0\nv_mov_b32 v10, 0\nv_mov_b32 v11, 0\nv_mov_b32 v12, 0x3f803f80")
    for p in range(5):
        a(f"s_waitcnt vmcnt({8-p})\ns_mov_b32 s6, {p*32*16384}\nbuffer_store_dwordx4 v[{16+4*p}:{19+4*p}], v7, s[12:15], s6 offen sc1")
        for j in range(4): a(f"v_dot2c_f32_bf16 v{8+2*(j>>1)}, v12, v{16+4*p+j}\nv_dot2c_f32_bf16 v{9+2*(j>>1)}, v{16+4*p+j}, v{16+4*p+j}")
    a.stamp(1)
    a("v_lshlrev_b32 v13, 4, v0\ns_nop 2\nds_write_b128 v13, v[8:11]\ns_waitcnt lgkmcnt(0)\ns_barrier")
    a("s_cmp_lg_u32 s32, 0\ns_cbranch_scc1 f_st2\nv_and_b32 v13, 15, v0\nv_lshlrev_b32 v13, 3, v13")
    for j in range(32): a(f"ds_read_b64 v[{16+2*j}:{17+2*j}], v13 offset:{128*j}")
    a("s_waitcnt lgkmcnt(0)")
    for st in (32,16,8,4,2):
        for j in range(0,st,2): a(f"v_pk_add_f32 v[{16+j}:{17+j}], v[{16+j}:{17+j}], v[{16+j+st}:{17+j+st}]")
    lnstat(a,16,17)
    a("s_lshl_b32 s3, s3, 3\ns_mov_b64 exec, 0xffff\nbuffer_store_dwordx2 v[16:17], v13, s[16:19], s3 offen sc1\ns_mov_b64 exec, -1")
    pollgo(a,"f_g1",28,8,9)
    a("f_st2:\ns_waitcnt vmcnt(0)\ns_barrier\ns_branch f_sig")
    a("f_mod:")
    a.ld(8,'wmod'); a.ld(12,'c')
    a("s_sub_u32 s6, s2, 128\ns_cmp_ge_u32 s6, 60\ns_cselect_b32 s3, 1, 0\ns_mul_i32 s7, s3, 60\ns_sub_u32 s6, s6, s7\nv_lshrrev_b32 v3, 3, v0")
    a("s_mul_i32 s7, s3, 320\nv_add_u32 v4, s7, v3\nv_mul_u32_u24 v5, 7680, v4\nv_and_b32 v6, 7, v0\nv_lshl_add_u32 v5, v6, 4, v5")
    a("s_lshl_b32 s7, s6, 7\nv_lshlrev_b32 v4, 1, v4\ns_waitcnt lgkmcnt(0)")
    a.srd(8,640*7680); a.srd(12,1280); a.srd(28,256); a.wsrd(16,4,MODP,2*15360); a.wsrd(64,4,FLG,4096)
    for p in range(10): a(f"buffer_load_ushort v{10+p}, v4, s[12:15], 0 offen offset:{64*p}")
    for p in range(10): a(f"buffer_load_dwordx4 v[{32+4*p}:{35+4*p}], v5, s[8:11], s7 offen\ns_add_u32 s7, s7, {32*7680}")
    a("s_waitcnt vmcnt(10)")
    for p in range(10):
        a(f"v_lshlrev_b32 v{10+p}, 16, v{10+p}\nv_mul_f32 v7, 0xbfb8aa3b, v{10+p}\nv_exp_f32 v7, v7\ns_nop 0\nv_add_f32 v7, 1.0, v7\nv_rcp_f32 v7, v7\ns_nop 0\nv_mul_f32 v{10+p}, v{10+p}, v7")
        a.rbf(10+p)
    for p in range(10):
        a(f"s_waitcnt vmcnt({9-p})")
        for j in range(4):
            op = "v_mul_f32" if p==0 else "v_fmac_f32"
            a(f"v_lshlrev_b32 v7, 16, v{32+4*p+j}\nv_and_b32 v8, 0xffff0000, v{32+4*p+j}\n{op} v{20+2*j}, v{10+p}, v7\n{op} v{21+2*j}, v{10+p}, v8")
    a.stamp(1)
    a("v_lshlrev_b32 v7, 5, v0\nds_write_b128 v7, v[20:23]\nds_write_b128 v7, v[24:27] offset:16\ns_waitcnt lgkmcnt(0)\ns_barrier")
    a("s_cmp_lg_u32 s32, 0\ns_cbranch_scc1 f_md2\nv_lshlrev_b32 v7, 2, v0")
    for j in range(32): a(f"ds_read_b32 v{10+j}, v7 offset:{256*j}")
    a("s_waitcnt lgkmcnt(0)")
    for st in (16,8,4,2):
        for j in range(0,st,2): a(f"v_pk_add_f32 v[{10+j}:{11+j}], v[{10+j}:{11+j}], v[{10+j+st}:{11+j+st}]")
    a("v_add_f32 v10, v10, v11\ns_mul_i32 s3, s3, 15360\ns_lshl_b32 s6, s6, 8\ns_add_u32 s3, s3, s6\nbuffer_store_dword v10, v7, s[16:19], s3 offen sc1")
    pollgo(a,"f_g2",28,8,9)
    a("f_md2:")
    a("f_sig:\ns_cmp_lg_u32 s32, 0\ns_cbranch_scc1 f_prep")
    a("s_lshl_b32 s3, s2, 4"); signal(a,64,"s3",8,9)
    a("f_prep:\ns_setprio 0"); a.stamp(2)
    a("s_cmp_ge_u32 s2, 205\ns_cbranch_scc1 f_zw\ns_cmp_ge_u32 s2, 135\ns_cbranch_scc1 f_w2")
    SC=8192; SB=9216; TB=25600
    a.ld(8,'w1'); a.ld(10,'w3')
    a("s_mul_i32 s3, s2, 2428\ns_lshr_b32 s3, s3, 16\ns_mul_i32 s6, s3, 27\ns_sub_u32 s6, s2, s6")
    a("s_and_b32 s33, s32, 1\ns_lshr_b32 s34, s32, 1\ns_lshl_b32 s35, s34, 3\nv_lshrrev_b32 v3, 3, v1\nv_add_u32 v3, s35, v3\nv_and_b32 v4, 7, v1")
    a(f"v_mul_u32_u24 v5, {8*3456}, v3\nv_lshl_add_u32 v5, v4, 4, v5\ns_mul_i32 s7, s3, {128*3456}\ns_lshl_b32 s36, s6, 7\ns_add_u32 s7, s7, s36")
    a("s_waitcnt lgkmcnt(0)\ns_cmp_eq_u32 s33, 1\ns_cselect_b32 s8, s10, s8\ns_cselect_b32 s9, s11, s9")
    a.srd(8,640*3456); a.wsrd(12,4,MODP,2*15360); a.wsrd(16,4,WP,108*40960); a.wsrd(20,4,SP,5*2*3456*4)
    for e in range(8): a(f"buffer_load_dwordx4 v[{16+4*e}:{19+4*e}], v5, s[8:11], s7 offen\ns_add_u32 s7, s7, 3456")
    a("s_cmp_lg_u32 s32, 0\ns_cbranch_scc1 f_pw_ok\ns_lshl_b32 s7, s3, 1\ns_add_u32 s7, s7, 158\nv_and_b32 v8, 1, v1\nv_mul_u32_u24 v8, 60, v8\nv_bfe_u32 v9, v1, 1, 1\nv_add3_u32 v8, v8, v9, s7\nv_bfe_u32 v9, v1, 2, 1\nv_mad_u32_u24 v10, v9, 10, v8")
    a("v_lshlrev_b32 v8, 4, v10"); pollf(a,"f_pw",64,[(8,0)],9)
    a("s_barrier")
    a(f"v_and_b32 v6, 127, v0\nv_lshlrev_b32 v6, 2, v6\ns_lshl_b32 s36, s3, 9\ns_mul_i32 s37, s34, 2560\ns_add_u32 s36, s36, {4*2560}\ns_sub_u32 s36, s36, s37")
    for p in range(2): a(f"buffer_load_dword v{8+p}, v6, s[12:15], s36 offen sc1\ns_add_u32 s36, s36, 15360")
    a("v_lshrrev_b32 v10, 1, v4\nv_and_b32 v11, 1, v4\nv_lshlrev_b32 v11, 4, v11\ns_lshl_b32 s36, s33, 3\nv_add_u32 v11, s36, v11\nv_lshl_add_u32 v13, v10, 5, v11")
    a("v_lshlrev_b32 v12, 13, v10\nv_lshl_add_u32 v12, v3, 9, v12\nv_add_u32 v11, v11, v4\nv_lshl_add_u32 v12, v11, 4, v12")
    a("s_cmp_eq_u32 s34, 0\ns_cselect_b32 s37, 1.0, 0\ns_waitcnt vmcnt(0)\nv_add_f32 v8, v8, v9"); a.rbf(8)
    a("v_add_f32 v8, s37, v8"); a.rbf(8)
    a(f"v_lshlrev_b32 v7, 2, v0\nds_write_b32 v7, v8 offset:{SC}\nv_lshlrev_b32 v9, 5, v3\ns_waitcnt lgkmcnt(0)\ns_barrier")
    a(f"ds_read_b128 v[48:51], v9 offset:{SC}\nds_read_b128 v[52:55], v9 offset:{SC+16}\nds_read_b128 v[56:59], v9 offset:{SC+512}\nds_read_b128 v[60:63], v9 offset:{SC+528}")
    a("v_mov_b32 v14, 0x3f803f80\ns_waitcnt lgkmcnt(0)")
    a.stamp(3)
    for i in range(8):
        O=80+4*i
        a(f"v_mov_b32 v{64+i}, 0")
        for e in range(0,8,2):
            for x in range(2):
                unp(a,8+x,16+4*(e+x)+(i>>1),i&1)
                a(f"{'v_mul_f32' if e+x==0 else 'v_fmac_f32'} v{72+i}, v{56+e+x}, v{8+x}")
            a(f"v_pk_mul_f32 v[8:9], v[{48+e}:{49+e}], v[8:9]\nv_cvt_pk_bf16_f32 v{O+e//2}, v8, v9\nv_dot2c_f32_bf16 v{64+i}, v14, v{O+e//2}")
        a(f"v_xor_b32 v15, {16*i}, v12\nds_write_b128 v15, v[{O}:{O+3}] offset:{TB}")
    a("v_lshlrev_b32 v9, 10, v3\nv_lshl_add_u32 v9, v13, 2, v9\ns_nop 1")
    a(f"ds_write_b128 v9, v[64:67] offset:{SB}\nds_write_b128 v9, v[68:71] offset:{SB+16}\nds_write_b128 v9, v[72:75] offset:{SB+512}\nds_write_b128 v9, v[76:79] offset:{SB+528}")
    a("v_bfe_u32 v8, v1, 4, 1\ns_lshl_b32 s36, s32, 1\nv_add_u32 v8, s36, v8\nv_xor_b32 v8, v8, v1\nv_lshlrev_b32 v8, 4, v8\ns_lshl_b32 s36, s32, 13\nv_add_u32 v8, s36, v8\nv_lshlrev_b32 v9, 4, v1")
    a(f"s_lshl_b32 s36, s6, 2\ns_add_u32 s36, s36, s32\ns_mul_i32 s36, s36, 40960\ns_lshl_b32 s37, s3, 13\ns_add_u32 s36, s36, s37\ns_add_u32 s37, s36, 4096\ns_waitcnt lgkmcnt(0)\ns_barrier")
    for j in range(8): a(f"ds_read_b128 v[{32+4*j}:{35+4*j}], v8 offset:{TB+1024*j}")
    for j in range(8): a(f"s_waitcnt lgkmcnt({7-j})\nbuffer_store_dwordx4 v[{32+4*j}:{35+4*j}], v9, s[16:19], s{36+(j>>2)} offen offset:{1024*(j&3)} {WT}")
    for j in range(16): a(f"ds_read_b32 v{16+j}, v7 offset:{SB+1024*j}")
    a(f"s_lshl_b32 s3, s3, 1\ns_add_u32 s3, s3, s34\ns_mul_i32 s3, s3, {3456*4}\ns_lshl_b32 s6, s6, 9\ns_add_u32 s3, s3, s6\ns_waitcnt lgkmcnt(0)")
    for st in (8,4,2,1):
        for j in range(st): a(f"v_add_f32 v{16+j}, v{16+j}, v{16+j+st}")
    a("buffer_store_dword v16, v6, s[20:23], s3 offen"); a.flush(8,5); a("s_endpgm")
    a("f_w2:")
    a.ld(8,'w2')
    a("s_sub_u32 s2, s2, 135\ns_mul_i32 s3, s2, 13108\ns_lshr_b32 s3, s3, 16\ns_mul_i32 s6, s3, 5\ns_sub_u32 s6, s2, s6")
    a("s_lshl_b32 s3, s3, 4\ns_lshl_b32 s6, s6, 4\nv_lshrrev_b32 v3, 4, v0\nv_add_u32 v3, s3, v3\nv_and_b32 v4, 15, v0\nv_add_u32 v4, s6, v4")
    a("v_lshrrev_b32 v5, 1, v3\nv_and_b32 v6, 1, v3\nv_lshlrev_b32 v6, 2, v6\nv_lshl_add_u32 v5, v5, 4, v6\nv_mul_u32_u24 v5, 1280, v5\nv_lshl_add_u32 v5, v4, 4, v5\ns_waitcnt lgkmcnt(0)")
    a.srd(8,1728*1280); a.wsrd(16,4,W2P,8*54*5120)
    a("s_movk_i32 s7, 10240")
    for e in range(8): a(f"buffer_load_dwordx4 v[{16+4*e}:{19+4*e}], v5, s[8:11], {'s7' if e>>2 else '0'} offen offset:{1280*(e&3)}")
    a("v_lshrrev_b32 v7, 2, v3\nv_mul_u32_u24 v7, 5120, v7\nv_and_b32 v8, 3, v3\nv_lshl_add_u32 v7, v8, 8, v7")
    for x in range(2):
        a(f"v_lshl_add_u32 v8, v4, 1, {x}\nv_mul_u32_u24 v9, 3277, v8\nv_lshrrev_b32 v9, 16, v9\nv_mul_u32_u24 v10, 20, v9\nv_sub_u32 v8, v8, v10")
        a(f"v_mul_u32_u24 v10, 13108, v8\nv_lshrrev_b32 v10, 16, v10\nv_mul_u32_u24 v11, 5, v10\nv_sub_u32 v8, v8, v11")
        a(f"v_mul_u32_u24 v9, {54*5120}, v9\nv_lshl_add_u32 v9, v8, 10, v9\nv_lshl_add_u32 v9, v10, 6, v9\nv_add_u32 v{12+x}, v9, v7")
    a("s_mov_b32 s36, 0x05040100\ns_mov_b32 s37, 0x07060302\nv_cmp_gt_u32 vcc, 216, v3\ns_and_saveexec_b64 s[6:7], vcc\ns_waitcnt vmcnt(0)")
    a.stamp(3)
    for i in range(8):
        O=48+4*i
        for e in range(0,8,2): a(f"v_perm_b32 v{O+e//2}, v{16+4*(e+1)+(i>>1)}, v{16+4*e+(i>>1)}, s{36+(i&1)}")
        a(f"buffer_store_dwordx4 v[{O}:{O+3}], v{12+(i>>2)}, s[16:19], 0 offen offset:{16*(i&3)}")
    a.flush(16,5)
    a("s_mov_b64 exec, -1\ns_add_u32 s2, s2, 135\nf_zw:")
    ZW=int(os.environ.get('ZW','3'))
    a.ld(12,'out'); a.wsrd(8,4,ACT8,216*32768)
    if os.environ.get('ZP','1')=='1':
        a("s_cmp_lg_u32 s32, 0\ns_cbranch_scc1 f_pz_ok\nv_and_b32 v8, 63, v0\nv_lshlrev_b32 v8, 4, v8")
        pollf(a,"f_pz",64,[(8,0),(8,1024),(8,2048),(8,184*16)],16)
        a("s_barrier")
    a("s_sub_u32 s2, s2, 135\ns_lshl_b32 s2, s2, 12\nv_lshlrev_b32 v3, 4, v0\nv_mov_b32 v8, 0\nv_mov_b32 v9, 0\nv_mov_b32 v10, 0\nv_mov_b32 v11, 0\ns_mov_b32 s3, s2\ns_waitcnt lgkmcnt(0)")
    a.srd(12,2048*1280)
    if ZW&1: a(f"f_zl:\nbuffer_store_dwordx4 v[8:11], v3, s[8:11], s3 offen sc1\ns_add_u32 s3, s3, {113*4096}\ns_cmp_lt_u32 s3, {216*32768}\ns_cbranch_scc1 f_zl")
    if ZW&2: a(f"f_zm:\nbuffer_store_dwordx4 v[8:11], v3, s[12:15], s2 offen sc1\ns_add_u32 s2, s2, {113*4096}\ns_cmp_lt_u32 s2, {2048*1280}\ns_cbranch_scc1 f_zm")
    a("f_pend:\ns_endpgm\nf_ipf:")
    ipf(a,"f_pcr","front_kernel",4096,int(os.environ.get('NI','10')))
    a("s_waitcnt vmcnt(0)\ns_endpgm")
```

```python
from common import *
import k4
R=5; EX=R*16384; LDS3=EX+2048
PD=12
X=os.environ.get('X','')
WT3=os.environ.get('WT3','sc1')
def gen(a):
    a.head("gemm1_kernel")
    a("s_cmp_ge_u32 s2, 256\ns_cbranch_scc1 k3_end")
    a.ld(4,'ws'); a.ld(28,'dbg'); a.stamp(0)
    a("s_mov_b32 s62, s2\ns_cmp_lt_u32 s2, 32\ns_cbranch_scc1 k3_st\ns_sub_u32 s2, s2, 32")
    a("v_and_b32 v1, 63, v0\nv_lshrrev_b32 v2, 6, v0\ns_and_b32 s3, s2, 7\nv_readfirstlane_b32 s32, v2\ns_lshr_b32 s6, s2, 3")
    a("s_lshr_b32 s7, s3, 1\ns_mul_i32 s7, s7, 28\ns_add_u32 s7, s7, s6\ns_and_b32 s3, s3, 1\ns_lshl_b32 s3, s3, 3\ns_and_b32 s6, s7, 7\ns_add_u32 s33, s3, s6\ns_lshr_b32 s34, s7, 3")
    a("s_lshl_b32 s35, s34, 3\ns_add_u32 s35, s35, s32\ns_min_u32 s36, s35, 107\ns_mul_i32 s36, s36, 40960")
    a("s_lshl_b32 s37, s32, 15\ns_lshl_b32 s3, s33, 10\ns_add_u32 s37, s37, s3\ns_lshl_b32 s38, s32, 11")
    a("v_lshlrev_b32 v3, 4, v1\ns_waitcnt lgkmcnt(0)")
    a.wsrd(8,4,X14,2048*1280); a.wsrd(12,4,WP,108*40960); a.wsrd(16,4,SP,5*2*3456*4); a.wsrd(20,4,ACT8,216*32768); a.wsrd(24,4,ST2,16384); a.srd(28,256)
    a(f"v_and_b32 v4, 255, v0\nv_lshlrev_b32 v4, 2, v4\ns_lshr_b32 s3, s32, 2\ns_mul_i32 s3, s3, {3456*4}\ns_lshl_b32 s6, s34, 10\ns_add_u32 s3, s3, s6")
    for p in range(5): a(f"buffer_load_dword v{16+p}, v4, s[16:19], s3 offen\ns_add_u32 s3, s3, {2*3456*4}")
    def body(stats):
        ops=[]
        def dma(c,j):
            a(f"s_add_u32 m0, s38, {(c%R)*16384+1024*j}\ns_add_u32 s3, s37, {c*16*16384+16384*j}\nbuffer_load_dwordx4 v{29 if 'd' in X and c>2 else 3}, s[8:11], s3 offen lds"); ops.append(('D',c))
        def wld(s):
            b=4*(s%16)
            if s%4==0: a(f"s_add_u32 s39, s36, {1024*s}")
            a(f"buffer_load_dwordx4 a[{b}:{b+3}], v{29 if 'w' in X and s>11 else 3}, s[12:15], s39 offen offset:{1024*(s%4)}"); ops.append(('W',s))
        done=[-1]
        def wait(k):
            i=len(ops)-1-ops[::-1].index(k)
            if i>done[0]: a(f"s_waitcnt vmcnt({len(ops)-1-i})"); done[0]=i
        def xrd(s,n):
            c=s//4; sl=c%R; base=(8 if sl<3 else 12)+n; off=(sl if sl<3 else sl-3)*16384+4096*(s%4); d=32+16*(s&1)+4*n
            a(f"ds_read_b64 v[{d}:{d+1}], v{base} offset:{off}\nds_read_b64 v[{d+2}:{d+3}], v{base} offset:{off+1024}")
        for c in range(PD//4):
            dma(c,0); dma(c,1)
            for s in range(4*c,4*c+4): wld(s)
        a("v_and_b32 v5, 31, v1\nv_lshrrev_b32 v6, 5, v1\nv_lshlrev_b32 v7, 11, v6\nv_lshl_add_u32 v7, v5, 3, v7\ns_and_b32 s6, s32, 3")
        for n in range(4): a(f"s_xor_b32 s{40+n}, s6, {n}\ns_lshl_b32 s7, s{40+n}, 8\nv_add_u32 v{8+n}, s7, v7\nv_add_u32 v{12+n}, {3*16384}, v{8+n}")
        a("v_and_b32 v24, 1, v1\nv_lshlrev_b32 v24, 3, v24\ns_lshl_b32 s46, s33, 4\nv_add_u32 v26, s46, v24\nv_lshlrev_b32 v27, 3, v5\ns_lshl_b32 s47, s33, 10")
        k4.setup(a)
        wait(('D',0))
        a(f"v_add_f32 v16, v16, v17\nv_add_f32 v18, v18, v19\nv_add_f32 v16, v16, v20\nv_lshlrev_b32 v4, 2, v0\nv_add_f32 v16, v16, v18\nv_add_u32 v4, {EX}, v4\nds_write_b32 v4, v16\ns_barrier")
        a.stamp(1)
        for n in range(4): xrd(0,n)
        def step(s,g,P):
            c=s//4
            if s%4==3 and c<9: wait(('D',c+1)); a("s_barrier")
            wait(('W',s))
            for n in range(4):
                a(f"s_waitcnt lgkmcnt({6 if s<39 else 6-2*n})")
                x=32+16*(s&1)+4*n; C=64+16*n; b=4*(s%16)
                if 'm' not in X: a(f"v_mfma_f32_32x32x16_bf16 v[{C}:{C+15}], a[{b}:{b+3}], v[{x}:{x+3}], {'0' if s==0 else 'v[%d:%d]'%(C,C+15)}")
                if s<39: xrd(s+1,n)
                if n==0 and s==22: a("buffer_load_dword v25, v24, s[28:31], s46 offen sc1"); ops.append(('P',0))
                if n==0 and s==26:
                    wait(('P',0)); a("v_cmp_eq_u32 vcc, 1, v25\ns_nop 4\ns_cmp_eq_u64 vcc, -1\ns_cbranch_scc1 k3_p%d_ok"%g); pollf(a,"k3_p%d"%g,28,[(26,0)],25)
                if s==27: ops.append('S'); a(f"s_lshl_b32 s7, s{40+n}, 8\ns_add_u32 s7, s7, s47\nbuffer_load_dwordx2 v[{16+2*n}:{17+2*n}], v27, s[24:27], s7 offen sc1")
                if n==1 and s+PD<40 and s%2==0: dma(c+PD//4,(s%4)//2)
                if n==2 and s+PD<40: wld(s+PD)
                if P: a(P.pop(0)); ops.append('p')
        for s in range(28): step(s,0,[])
        a("s_cmp_ge_u32 s32, 4\ns_cbranch_scc1 k3_t1")
        o0=list(ops); d0=done[0]
        for g in range(2):
            ops[:]=o0; done[0]=d0; P=k4.pl(g)
            for s in range(28,40): step(s,g,P)
            wait('S')
            a("s_branch k3_t2\nk3_t1:" if g==0 else "k3_t2:")
    body(False)
    a.stamp(2)
    a("s_lshl_b32 s63, s33, 8\ns_lshl_b32 s3, s34, 4\ns_add_u32 s63, s63, s3")
    k4.ring(a)
    a("s_cmp_ge_u32 s35, 108\ns_cbranch_scc1 k4_in")
    a(f"s_lshl_b32 s7, s32, 7\ns_add_u32 s7, s7, {EX}\nv_lshlrev_b32 v4, 4, v6\nv_add_u32 v4, s7, v4")
    for q in range(4): a(f"ds_read_b128 v[{32+4*q}:{35+4*q}], v4 offset:{32*q}\nds_read_b128 v[{48+4*q}:{51+4*q}], v4 offset:{1024+32*q}")
    a("v_lshlrev_b32 v7, 15, v6\nv_lshl_add_u32 v7, v5, 4, v7\ns_lshl_b32 s35, s35, 16\ns_lshl_b32 s33, s33, 11\ns_add_u32 s35, s35, s33")
    a("s_mov_b32 s44, 0xbfb8aa3b\ns_mov_b32 s45, 0xbfb8aa3b\ns_waitcnt lgkmcnt(0)")
    for n in range(4):
        st=16+2*n
        for ap in range(2):
            for bp in range(2):
                g=64+16*n+8*ap+2*bp; u=g+4; sg=32+8*ap+2*bp; t=8+4*bp
                a(f"v_pk_fma_f32 v[{t}:{t+1}], v[{sg}:{sg+1}], v[{st}:{st+1}], v[{sg+16}:{sg+17}] op_sel_hi:[1,0,1]")
                a(f"v_pk_fma_f32 v[{t+2}:{t+3}], v[{sg+4}:{sg+5}], v[{st}:{st+1}], v[{sg+20}:{sg+21}] op_sel_hi:[1,0,1]")
                a(f"v_pk_fma_f32 v[{g}:{g+1}], v[{g}:{g+1}], v[{st}:{st+1}], v[{t}:{t+1}] op_sel:[0,1,0]")
                a(f"v_pk_fma_f32 v[{u}:{u+1}], v[{u}:{u+1}], v[{st}:{st+1}], v[{t+2}:{t+3}] op_sel:[0,1,0]")
                a(f"v_pk_mul_f32 v[{t}:{t+1}], v[{g}:{g+1}], s[44:45]\nv_pk_mul_f32 v[{u}:{u+1}], v[{u}:{u+1}], v[{g}:{g+1}]\nv_exp_f32 v{t}, v{t}\nv_exp_f32 v{t+1}, v{t+1}")
            for bp in range(2):
                t=8+4*bp
                a(f"v_pk_add_f32 v[{t}:{t+1}], v[{t}:{t+1}], 1.0 op_sel_hi:[1,0]\nv_rcp_f32 v{t}, v{t}\nv_rcp_f32 v{t+1}, v{t+1}")
            for bp in range(2):
                u=64+16*n+8*ap+2*bp+4; t=8+4*bp
                a(f"v_pk_mul_f32 v[{u}:{u+1}], v[{u}:{u+1}], v[{t}:{t+1}]\nv_cvt_pk_bf16_f32 v{24+4*(n&1)+2*ap+bp}, v{u}, v{u+1}")
        o=24+4*(n&1)
        a(f"s_lshl_b32 s7, s{40+n}, 9\ns_add_u32 s7, s7, s35\nbuffer_store_dwordx4 v[{o}:{o+3}], v7, s[20:23], s7 offen {WT3}")
    a("k4_in:"); k4.gen(a)
    a("k3_end:\ns_endpgm\nk3_st:")
    a("v_and_b32 v3, 31, v0\nv_lshrrev_b32 v4, 5, v0\nv_lshlrev_b32 v4, 14, v4\nv_lshl_add_u32 v3, v3, 4, v4\ns_lshl_b32 s3, s2, 9\ns_mov_b32 s6, s3\nv_lshrrev_b32 v2, 6, v0\ns_waitcnt lgkmcnt(0)")
    a.wsrd(8,4,X14,2048*1280); a.wsrd(24,4,ST2,16384); a.srd(28,256)
    for p in range(10): a(f"buffer_load_dwordx4 v[{16+4*p}:{19+4*p}], v3, s[8:11], s6 offen\ns_add_u32 s6, s6, {16*16384}")
    a("v_mov_b32 v8, 0\nv_mov_b32 v9, 0\nv_mov_b32 v10, 0\nv_mov_b32 v11, 0\nv_mov_b32 v12, 0x3f803f80\nv_readfirstlane_b32 s32, v2")
    for p in range(10):
        a(f"s_waitcnt vmcnt({9-p})")
        for j in range(4): a(f"v_dot2c_f32_bf16 v{8+2*(j>>1)}, v12, v{16+4*p+j}\nv_dot2c_f32_bf16 v{9+2*(j>>1)}, v{16+4*p+j}, v{16+4*p+j}")
    a("v_lshlrev_b32 v13, 4, v0\ns_nop 2\nds_write_b128 v13, v[8:11]\ns_waitcnt lgkmcnt(0)\ns_barrier\ns_cmp_lg_u32 s32, 0\ns_cbranch_scc1 k3_s2\nv_lshlrev_b32 v13, 3, v0")
    for j in range(16): a(f"ds_read_b64 v[{16+2*j}:{17+2*j}], v13 offset:{512*j}")
    a("s_waitcnt lgkmcnt(0)")
    for st in (16,8,4,2):
        for j in range(0,st,2): a(f"v_pk_add_f32 v[{16+j}:{17+j}], v[{16+j}:{17+j}], v[{16+j+st}:{17+j+st}]")
    lnstat(a,16,17)
    a("v_mul_f32 v16, v16, v17\nv_sub_f32 v16, 0, v16\nbuffer_store_dwordx2 v[16:17], v13, s[24:27], s3 offen sc1\ns_lshl_b32 s3, s2, 3\ns_waitcnt vmcnt(0)")
    signal(a,28,"s3",8,9)
    a("k3_s2:"); a.stamp(1); a.stamp(2)
    a("v_and_b32 v3, 63, v0\nv_lshlrev_b32 v3, 4, v3")
    k4.setup(a)
    k4.ring(a)
    a("s_cmp_ge_u32 s32, 4\ns_cbranch_scc1 k3_s3")
    for x in k4.pl(0): a(x)
    a("s_branch k4_in\nk3_s3:")
    for x in k4.pl(1): a(x)
    a("s_branch k4_in")
```

```python
from common import *
D=4
NL=int(os.environ.get('NL','3')); LB=83968
NW=int(os.environ.get('NW','0'))
NR=int(os.environ.get('NR','4'))
WQ=[32,36,40,44]+list(range(64,128,4))
def wr(i,m): q=WQ[5*(i%D)+m]; return f"a[{q}:{q+3}]"
def wl1(i,m): return (f"s_add_u32 s56, s52, {i*20480+4096*(m>>2)}\n" if m%4==0 else "")+f"buffer_load_dwordx4 {wr(i,m)}, v3, s[48:51], s56 offen offset:{1024*(m&3)}"
def wl(a,i):
    for m in range(5): a(f"ds_read_b128 {wr(i,m)}, v4 offset:{(i-D)*20480+1024*m}" if D<=i<D+NL else f"ds_read_b128 {wr(i,m)}, v2 offset:{(i-D-NL)*5120+1024*m}" if i<D+NL+NR else wl1(i,m))
def setup(a):
    a("s_and_b32 s3, s62, 7\ns_lshr_b32 s6, s62, 3\ns_lshl_b32 s3, s3, 2\ns_and_b32 s54, s6, 3\ns_add_u32 s54, s54, s3\ns_lshr_b32 s55, s6, 2")
    a("s_and_b32 s3, s32, 3\ns_mul_i32 s52, s55, 54\ns_add_u32 s52, s52, s3\ns_mul_i32 s52, s52, 5120\ns_mul_i32 s53, s3, 5120")
    a(f"s_and_b32 s6, s54, 3\ns_lshl_b32 s6, s6, 2\ns_add_u32 s6, s6, s3\ns_lshl_b32 s6, s6, 10\ns_mul_i32 s58, s55, {54*5120}\ns_add_u32 s58, s58, s6")
    a("s_lshl_b32 s6, s55, 2\ns_add_u32 s6, s6, s3\ns_lshl_b32 s6, s6, 15\ns_lshl_b32 s59, s54, 10\ns_add_u32 s59, s59, s6")
    a.wsrd(48,4,W2P,8*54*5120)
def pl(g):
    if g==0: return [wl1(i,m) for i in range(D) for m in range(5)]
    return [f"s_add_u32 m0, s53, {LB+i*20480+1024*m}\ns_add_u32 s56, s52, {(i+D)*20480+1024*m}\nbuffer_load_dwordx4 v3, s[48:51], s56 offen lds" for i in range(NL) for m in range(5)]+[f"s_add_u32 s56, s58, {(D+NL)*20480+16384*j}\nbuffer_load_dwordx4 a[{64+4*j}:{67+4*j}], v3, s[48:51], s56 offen" for j in range(NW)]
def ring(a):
    if not NR: return
    a(f"s_lshr_b32 s3, s32, 2\ns_mul_i32 s6, s3, 10240\ns_lshl_b32 s7, s53, 2\ns_add_u32 s6, s6, s7\ns_mul_i32 s3, s3, 40960\ns_add_u32 s3, s3, s52\ns_barrier")
    for i in range(2):
        for m in range(5): a(f"s_add_u32 m0, s6, {5120*i+1024*m}\ns_add_u32 s56, s3, {(i+D+NL)*20480+1024*m}\nbuffer_load_dwordx4 v3, s[48:51], s56 offen lds")
def ar(i,n):
    j=i%D; b=[0,16,48,112][j]+4*n
    return f"{'a' if j<3 else 'v'}[{b}:{b+3}]"
def gen(a):
    a.ld(24,'out'); a.wsrd(64,4,FLG+4096,4096)
    a("s_waitcnt vmcnt(0)\ns_barrier\ns_cmp_ge_u32 s32, 4\ns_cbranch_scc1 k4_wm\ns_cmp_lg_u32 s32, 0\ns_cbranch_scc1 k4_ns\ns_cmp_lt_u32 s62, 32\ns_cbranch_scc1 k4_ns")
    signal(a,64,"s63",8,9)
    a("k4_ns:"); a.stamp(3)
    a("s_mov_b32 s33, s54\ns_mov_b32 s34, s55\ns_lshl_b32 s36, s32, 17\ns_lshl_b32 s3, s33, 10\ns_add_u32 s36, s36, s3")
    a(f"v_and_b32 v1, 63, v0\ns_lshl_b32 s7, s53, 2\nv_add_u32 v2, s7, v3\ns_add_u32 s53, s53, {LB}\nv_add_u32 v4, s53, v3\nv_and_b32 v5, 15, v1\nv_lshrrev_b32 v6, 4, v1\nv_lshlrev_b32 v7, 15, v6\nv_lshl_add_u32 v7, v5, 4, v7")
    a("s_waitcnt lgkmcnt(0)")
    a.wsrd(8,4,ACT8,216*32768); a.wsrd(16,4,MODP,2*15360); a.wsrd(20,4,X14,2048*1280); a.srd(24,2048*1280)
    ops=[]
    def ld(i):
        if i>=D:
            wl(a,i)
            if i>=D+NL+NR: ops.extend(['w']*5)
        for n in range(4): a(f"buffer_load_dwordx4 {ar(i,n)}, v{8+n}, s[8:11], s36 offen"); ops.append((i,n))
        a(f"s_add_u32 s36, s36, {16*32768}")
    a(f"v_lshlrev_b32 v12, 2, v0\ns_mul_i32 s3, s34, 320\ns_add_u32 s3, s3, {5*2560}")
    for p in range(2): a(f"buffer_load_dword v{16+p}, v12, s[16:19], s3 offen\ns_add_u32 s3, s3, 15360")
    a(f"v_mul_u32_u24 v13, {5*16384}, v6\nv_lshl_add_u32 v13, v5, 3, v13\ns_mul_i32 s3, s34, {20*16384}\ns_lshl_b32 s6, s33, 9\ns_add_u32 s3, s3, s6\ns_lshl_b32 s6, s32, 7\ns_add_u32 s3, s3, s6")
    for m in range(5): a(f"buffer_load_dwordx2 v[{20+2*m}:{21+2*m}], v13, s[20:23], s3 offen\ns_add_u32 s3, s3, 16384")
    a("s_cmp_lg_u32 s32, 0\ns_cbranch_scc1 k4_p_ok\nv_min_u32 v8, 13, v1\nv_lshlrev_b32 v8, 4, v8\ns_lshr_b32 s3, s33, 1\ns_lshl_b32 s3, s3, 8\nv_add_u32 v8, s3, v8")
    pollf(a,"k4_p",64,[(8,0)],9)
    a("s_barrier"); a.stamp(4); a.cyc(0)
    for n in range(4): a(f"s_xor_b32 s7, s32, {n}\ns_lshl_b32 s7, s7, 8\nv_add_u32 v{8+n}, s7, v7")
    for i in range(D): ld(i)
    for i in range(14):
        b=20*(i%D)
        if D<=i<D+NL+NR: a(f's_waitcnt lgkmcnt({min(10,5*(D+NL+NR-1-i))})')
        for n in range(4):
            a(f"s_waitcnt vmcnt({len(ops)-1-ops.index((i,n))})")
            for m in range(5):
                C=32+20*n+4*m
                a(f"v_mfma_f32_16x16x32_bf16 v[{C}:{C+3}], {wr(i,m)}, {ar(i,n)}, {'0' if i==0 else 'v[%d:%d]'%(C,C+3)}")
        if i==13: a.stamp(5); a.cyc(1)
        if i+D<14: ld(i+D)
    a("v_add_f32 v16, v16, v17\ns_nop 1"); a.rbf(16)
    a("v_cmp_gt_u32 vcc, 80, v0\ns_and_saveexec_b64 s[6:7], vcc\nv_add_u32 v12, 81920, v12\nds_write_b32 v12, v16\ns_mov_b64 exec, -1")
    for n in range(1,4):
        for m in range(5): C=32+20*n+4*m; a(f"ds_write_b128 v4, v[{C}:{C+3}] offset:{20480*(n-1)+1024*m}")
    a("v_mul_u32_u24 v15, 80, v6\nv_add_u32 v15, 81920, v15\ns_waitcnt lgkmcnt(0)\ns_barrier")
    for n in range(1,4):
        a(f"s_xor_b32 s7, s32, {n}\ns_mul_i32 s7, s7, 5120\ns_add_u32 s7, s7, {LB}\nv_add_u32 v14, s7, v3")
        for m in range(5): C=32+20*n+4*m; a(f"ds_read_b128 v[{C}:{C+3}], v14 offset:{20480*(n-1)+1024*m}")
        if n==2: a("s_waitcnt lgkmcnt(5)"); [a(f"v_pk_add_f32 v[{32+j}:{33+j}], v[{32+j}:{33+j}], v[{52+j}:{53+j}]") for j in range(0,20,2)]
    for m in range(5): a(f"ds_read_b128 v[{52+4*m}:{55+4*m}], v15 offset:{16*m}")
    a("s_waitcnt lgkmcnt(5)")
    for j in range(0,20,2): a(f"v_pk_add_f32 v[{72+j}:{73+j}], v[{72+j}:{73+j}], v[{92+j}:{93+j}]")
    for j in range(0,20,2): a(f"v_pk_add_f32 v[{32+j}:{33+j}], v[{32+j}:{33+j}], v[{72+j}:{73+j}]")
    a("v_mul_u32_u24 v13, 1280, v5\nv_mul_u32_u24 v14, 40, v6\nv_add_u32 v13, v13, v14")
    a(f"s_lshl_b32 s3, s33, 2\ns_add_u32 s3, s3, s32\ns_mul_i32 s3, s3, {16*1280}\ns_mul_i32 s6, s34, 160\ns_add_u32 s3, s3, s6\ns_waitcnt lgkmcnt(0)")
    for j in range(10):
        a(f"v_lshlrev_b32 v16, 16, v{20+j}\nv_and_b32 v17, 0xffff0000, v{20+j}\nv_pk_fma_f32 v[16:17], v[{32+2*j}:{33+2*j}], v[{52+2*j}:{53+2*j}], v[16:17]\nv_cvt_pk_bf16_f32 v{72+j}, v16, v17")
    a("buffer_store_dwordx4 v[72:75], v13, s[24:27], s3 offen\nbuffer_store_dwordx4 v[76:79], v13, s[24:27], s3 offen offset:16\nbuffer_store_dwordx2 v[80:81], v13, s[24:27], s3 offen offset:32")
    a.flush(0,7)
    a("s_endpgm\nk4_wm:"); a.wsrd(8,4,ACT8,216*32768); a("s_barrier")
    for j in range(int(os.environ.get('NA','0'))): a(f"s_add_u32 s56, s59, {(64+32*j)*32768}\nbuffer_load_dwordx4 a[{4*j}:{4*j+3}], v3, s[8:11], s56 offen")
    a("s_waitcnt vmcnt(0)")
```

```python
import sys; sys.path.insert(0,'g')
from common import *
import f1,k3,k4
ref=open(f'cdna_kernels/{NAME}.s.ref').read().split('\n')
hdr=[l for l in ref if l.startswith(';') and '@launch' not in l and 'Override' not in l and 'grid=ceil' not in l]
a=A()
for k in (f1,k3): k.gen(a)
out='\n'.join(hdr)+'\n'
out+=f"""; @launch kernel=front_kernel grid=({f1.NWG+8},1,1) block=(256,1,1) lds={f1.LDS}
; @launch kernel=gemm1_kernel grid=(256,1,1) block=(512,1,1) lds={k3.LDS3+k4.NL*20480}
.amdgcn_target "amdgcn-amd-amdhsa--gfx950"
.text
"""+a.txt()+'code_end:\n.section .rodata,"a"\n'+desc("front_kernel",256,256,80)+desc("gemm1_kernel",256,128,80)
open(sys.argv[1] if len(sys.argv)>1 else f'cdna_kernels/{NAME}.s','w').write(out)
```
